```python
import torch

def _softmax(x, axis=-1):
    return torch.softmax(x, dim=axis)
def _gelu(x):
    return torch.nn.functional.gelu(x, approximate="tanh")
def _silu(x):
    return torch.nn.functional.silu(x)
def _sigmoid(x):
    return torch.sigmoid(x)
def _layernorm(x, axis=-1, eps=1e-5):
    m = x.mean(dim=axis, keepdim=True)
    v = x.var(dim=axis, keepdim=True, unbiased=False)
    return (x - m) / torch.sqrt(v + eps)
def _scatter_add(tgt, idx, src, axis=0):
    return tgt.clone().index_add_(axis, idx, src)
def _segment_sum(src, seg, n):
    out = torch.zeros((n,) + src.shape[1:], dtype=src.dtype)
    return out.index_add_(0, seg, src)
def _pad(x, pw):
    flat = tuple(v for pair in reversed(pw) for v in pair)
    return torch.nn.functional.pad(x, flat)

kernel_name = 'standalone__low_rank_proj_linformer__decode'

def setup_inputs():

    _w = (lambda a: (lambda t: t.to(torch.bfloat16) if t.is_floating_point() else t)(torch.as_tensor(a)))
    B, H, Sq, Skv, Dh, R = 4, 16, 1, 8192, 256, 64
    return {
        "q": _w((lambda *s: torch.randn(*s, dtype=torch.bfloat16) * 0.8)(B, H, Sq, Dh)),
        "k": _w((lambda *s: torch.randn(*s, dtype=torch.bfloat16) * 0.8)(B, H, Skv, Dh)),
        "v": _w((lambda *s: torch.randn(*s, dtype=torch.bfloat16) * 0.05)(B, H, Skv, Dh)),
        "e_proj": _w((lambda *s: torch.randn(*s, dtype=torch.bfloat16) * 0.8)(R, Skv) * (Skv ** -0.5)),
        "f_proj": _w((lambda *s: torch.randn(*s, dtype=torch.bfloat16) * 0.05)(R, Skv) * (Skv ** -0.5)),
    }

def reference(q, k, v, e_proj, f_proj):
    B, H, Sq, Dh = q.shape
    kp = torch.einsum("rn,bhnd->bhrd", e_proj, k)
    vp = torch.einsum("rn,bhnd->bhrd", f_proj, v)
    scores = torch.einsum("bhqd,bhrd->bhqr", q, kp) * (Dh ** -0.5)
    p = _softmax(scores, axis=-1)
    o = torch.einsum("bhqr,bhrd->bhqd", p, vp)
    return o
```

```python
import sys

KNAME = "standalone__low_rank_proj_linformer__decode_kernel"

P_OFF = 0x000000
W_OFF = 0x100000
O_OFF = 0x400000
C_OFF = 0x600000
T_OFF = 0x610000
ST_OFF = 0x700000
WS_SIZE = 0x800000

E_BASE, E_ROW = 0, 1040
F_BASE = 66560
S_BASE = 132096
O_BASE = 140288
T_BASE = 156672
FLAGS = 158720
FL_K, FL_O, FL_PROG, FL_R, FL_DESC = FLAGS, FLAGS + 16, FLAGS + 32, FLAGS + 48, FLAGS + 64
LDS_BYTES = 160000
Q = 8

class A:
    def __init__(self): self.l = []
    def __call__(self, s):
        for x in s.split("\n"):
            x = x.strip()
            if x: self.l.append(("" if x.endswith(":") else "  ") + x)
    def text(self): return "\n".join(self.l)

def vr(b, n=1): return f"v{b}" if n == 1 else f"v[{b}:{b+n-1}]"
def sr(b, n=1): return f"s{b}" if n == 1 else f"s[{b}:{b+n-1}]"

def gen(D=2, NSTATIC=16, stamps=False, guard=False, kflags="nt", vflags="nt"):
    a = A()
    N = KNAME
    NDYN = 512 - 16 * NSTATIC
    assert NSTATIC % 8 == 0 and NSTATIC in (0, 8, 16, 24, 32)
    GDYN0 = NSTATIC // 8
    lab = lambda s: f"L_{s}"

    def sleep(n):
        g = f"\ns_add_u32 s97, s97, 1\ns_cmp_gt_u32 s97, 0x40000\ns_cbranch_scc1 {lab('done')}" if guard else ""
        return f"s_sleep {n}" + g
    def srd(base, plo, phi, size):
        a(f"s_mov_b32 s{base}, s{plo}\ns_and_b32 s{base+1}, s{phi}, 0xffff\ns_mov_b32 s{base+2}, {size}\ns_mov_b32 s{base+3}, 0x20000")

    def stamp(idx, vst):
        if stamps:
            a(f"s_memrealtime s[98:99]\ns_waitcnt lgkmcnt(0)\nv_writelane_b32 v{vst}, s98, {idx}")

    def stamp_store(vst, vtmp, slot):
        if stamps:
            a(f"s_lshl_b32 s98, s2, 3\ns_add_u32 s98, s98, {slot}\ns_lshl_b32 s98, s98, 8\ns_add_u32 s98, s98, {ST_OFF}")
            a(f"v_mbcnt_lo_u32_b32 v{vtmp}, -1, 0\nv_mbcnt_hi_u32_b32 v{vtmp}, -1, v{vtmp}\nv_lshlrev_b32 v{vtmp}, 2, v{vtmp}")
            a(f"buffer_store_dword v{vst}, v{vtmp}, s[32:35], s98 offen\ns_waitcnt vmcnt(0)")

    a(f"{N}:")
    a(f"s_cmp_ge_u32 s2, 256\ns_cbranch_scc1 {lab('done')}")
    a("s_load_dwordx16 s[4:19], s[0:1], 0")
    if guard: a("s_mov_b32 s97, 0")
    a("v_lshrrev_b32 v1, 6, v0\nv_and_b32 v2, 63, v0")
    a("s_and_b32 s3, s2, 7\ns_lshr_b32 s24, s2, 3")
    a("v_readfirstlane_b32 s20, v1")
    a("s_and_b32 s21, s24, 15\ns_lshr_b32 s24, s24, 4\ns_lshl_b32 s24, s24, 3\ns_add_u32 s22, s24, s3\ns_lshl_b32 s23, s21, 2")
    a(f"s_cmp_ge_u32 s20, 4\ns_cbranch_scc1 {lab('helpers')}")

    vOff = 4; R = 12; Qr = 44; Aa = 60; TMP = 68; vSa = 76; vFK = 77
    ACC = 80; WC = 88; WN = 96; vWoff = 104; vOa = 105; vProg = 106; vD = 108; vOne = 110; vST = 111; vT = 112; vFO = 113
    X = 60
    a(f"v_and_b32 v3, 31, v2\nv_lshlrev_b32 v3, 4, v3")
    a(f"s_lshl_b32 s25, s20, 10\nv_lshlrev_b32 v{vOff}, 4, v2\nv_add_u32 v{vOff}, s25, v{vOff}")
    for t in range(1, 8):
        a(f"v_add_u32 v{vOff+t}, {t*4096}, v{vOff}")
    a(f"s_lshl_b32 s40, s23, 22\ns_lshl_b32 s41, s22, 18\ns_add_u32 s40, s40, s41")
    a(f"s_lshl_b32 s41, s23, 9")
    a("s_waitcnt lgkmcnt(0)")
    srd(36, 4, 5, 32768)
    srd(24, 6, 7, 0x10000000)
    for g in range(4):
        a(f"buffer_load_dwordx4 {vr(Qr+4*g,4)}, v3, s[36:39], s41 offen offset:{g*512}")
    for t in range(8):
        a(f"buffer_load_dwordx4 {vr(R+4*t,4)}, v{vOff+t}, s[24:27], s40 offen {kflags}")
    srd(28, 8, 9, 0x10000000)
    srd(32, 18, 19, WS_SIZE)
    if stamps:
        a(f"v_mov_b32 v{vST}, 0")
    stamp(0, vST)
    a(f"v_and_b32 v{vSa}, 16, v2")
    a(f"v_and_b32 v{TMP}, 8, v2\nv_lshlrev_b32 v{TMP}, 2, v{TMP}\nv_add_u32 v{vSa}, v{vSa}, v{TMP}")
    a(f"v_and_b32 v{TMP}, 4, v2\nv_lshlrev_b32 v{TMP}, 4, v{TMP}\nv_add_u32 v{vSa}, v{vSa}, v{TMP}")
    a(f"v_lshrrev_b32 v{TMP}, 4, v2\nv_and_b32 v{TMP}, 2, v{TMP}\nv_add_u32 v{vSa}, v{vSa}, v{TMP}")
    a(f"s_lshl_b32 s42, s20, 2\ns_add_u32 s42, s42, {S_BASE}\nv_add_u32 v{vSa}, s42, v{vSa}")
    a(f"v_mov_b32 v{vFK}, {FL_K}\nv_mov_b32 v{vFO}, {FL_O}\nv_mov_b32 v{vOne}, 1")
    a(f"v_lshrrev_b32 v{vWoff}, 5, v2\nv_lshlrev_b32 v{vWoff}, 5, v{vWoff}\ns_lshl_b32 s42, s20, 6\nv_add_u32 v{vWoff}, s42, v{vWoff}")
    a(f"v_and_b32 v{vOa}, 31, v2\nv_lshlrev_b32 v{vOa}, 5, v{vOa}\nv_lshrrev_b32 v{TMP}, 5, v2\nv_lshlrev_b32 v{TMP}, 2, v{TMP}\nv_add_u32 v{vOa}, v{vOa}, v{TMP}")
    a(f"s_lshl_b32 s42, s20, 10\ns_add_u32 s42, s42, {O_BASE}\nv_add_u32 v{vOa}, s42, v{vOa}")
    a(f"s_lshl_b32 s42, s20, 2\ns_add_u32 s42, s42, {FL_PROG}\nv_mov_b32 v{vProg}, s42")
    a("s_mov_b32 s55, 0xffff0000")
    for i in range(8): a(f"v_mov_b32 v{ACC+i}, 0")
    a("s_barrier")

    def consumeK(t):
        r = R + 4 * t
        a(f"v_dot2_f32_bf16 v{Aa+t}, v{r}, v{Qr}, 0")
        for i in range(1, 4):
            a(f"v_dot2_f32_bf16 v{Aa+t}, v{r+i}, v{Qr+i}, v{Aa+t}")
    def consumeV(t):
        r = R + 4 * t
        for i in range(4):
            a(f"v_lshlrev_b32 v{X+2*i}, 16, v{r+i}\nv_and_b32 v{X+2*i+1}, s55, v{r+i}")
        wp = WC + (t & ~1)
        sel = "op_sel_hi:[1,0,1]" if t % 2 == 0 else "op_sel:[0,1,0] op_sel_hi:[1,1,1]"
        for i in range(4):
            a(f"v_pk_fma_f32 {vr(ACC+2*i,2)}, {vr(X+2*i,2)}, {vr(wp,2)}, {vr(ACC+2*i,2)} {sel}")
    def body(consume, issue):
        if issue == 'V':
            a(f"s_lshr_b32 s54, s46, 7\ns_add_u32 s54, s54, {W_OFF}")
        for t in range(8):
            if t == 0: cnt = 7
            elif issue == 'V': cnt = 9
            elif issue == 'K': cnt = 7
            else: cnt = 7 - t
            a(f"s_waitcnt vmcnt({cnt})")
            if t == 0:
                if consume == 'V':
                    for i in range(8): a(f"v_mov_b32 v{WC+i}, v{WN+i}")
                if issue == 'V':
                    a(f"buffer_load_dwordx4 {vr(WN,4)}, v{vWoff}, s[32:35], s54 offen sc1")
                    a(f"buffer_load_dwordx4 {vr(WN+4,4)}, v{vWoff}, s[32:35], s54 offen offset:16 sc1")
            (consumeK if consume == 'K' else consumeV)(t)
            r = R + 4 * t
            if issue == 'K':
                a(f"buffer_load_dwordx4 {vr(r,4)}, v{vOff+t}, s[24:27], s44 offen {kflags}")
            elif issue == 'V':
                a(f"buffer_load_dwordx4 {vr(r,4)}, v{vOff+t}, s[28:31], s46 offen {vflags}")
    def reduceK(nop_first):
        A0 = Aa
        if nop_first: a("s_nop 2")
        for p in range(4): a(f"v_permlane16_swap_b32 v{A0+2*p}, v{A0+2*p+1}")
        for p in range(4): a(f"v_add_f32 v{TMP+p}, v{A0+2*p}, v{A0+2*p+1}")
        c0, c1, d = TMP + 4, TMP + 5, TMP + 6
        a(f"v_add_f32_dpp v{c0}, v{TMP}, v{TMP} row_ror:8 row_mask:0xf bank_mask:0x3")
        a(f"v_add_f32_dpp v{c0}, v{TMP+1}, v{TMP+1} row_ror:8 row_mask:0xf bank_mask:0xc")
        a(f"v_add_f32_dpp v{c1}, v{TMP+2}, v{TMP+2} row_ror:8 row_mask:0xf bank_mask:0x3")
        a(f"v_add_f32_dpp v{c1}, v{TMP+3}, v{TMP+3} row_ror:8 row_mask:0xf bank_mask:0xc")
        a("s_nop 0")
        a(f"v_add_f32_dpp v{d}, v{c0}, v{c0} row_half_mirror row_mask:0xf bank_mask:0x5")
        a(f"v_add_f32_dpp v{d}, v{c1}, v{c1} row_half_mirror row_mask:0xf bank_mask:0xa")
        a("s_nop 1")
        a(f"v_add_f32_dpp v{d}, v{d}, v{d} quad_perm:[1,0,3,2] row_mask:0xf bank_mask:0xf")
        a("s_nop 1")
        a(f"v_add_f32_dpp v{d}, v{d}, v{d} quad_perm:[2,3,0,1] row_mask:0xf bank_mask:0xf")
        a(f"v_cvt_pk_bf16_f32 v{c0}, v{d}, v{d}")
        a(f"v_lshlrev_b32 v{c1}, 16, v{c0}")
        a(f"ds_write_b16 v{vSa}, v{c0}")
        a(f"v_sub_f32 v{c1}, v{d}, v{c1}")
        a(f"v_cvt_pk_bf16_f32 v{TMP}, v{c1}, v{c1}")
        a(f"ds_write_b16 v{vSa}, v{TMP} offset:1024")
        a(f"v_add_u32 v{vSa}, 128, v{vSa}")
    def endheadK(last):
        a("s_waitcnt lgkmcnt(0)")
        a(f"s_mov_b64 exec, 1\nds_add_u32 v{vFK}, v{vOne}\ns_mov_b64 exec, -1")
        if not last:
            a(f"v_add_u32 v{vFK}, 4, v{vFK}\nv_add_u32 v{vSa}, 1024, v{vSa}")
            for i in range(12): a(f"v_mov_b32 v{Qr+i}, v{Qr+4+i}")
    def getdesc(tag, idx):
        a(f"s_and_b32 s50, {idx}, {Q-1}\ns_lshl_b32 s50, s50, 3\ns_add_u32 s50, s50, {FL_DESC}\nv_mov_b32 v{vT}, s50\ns_add_u32 s51, {idx}, 1")
        a(f"{lab(tag+'_spin')}:\nds_read_b64 {vr(vD,2)}, v{vT}\ns_waitcnt lgkmcnt(0)\nv_readfirstlane_b32 s56, v{vD}\nv_readfirstlane_b32 s52, v{vD+1}")
        a(f"s_cmp_eq_u32 s52, s51\ns_cbranch_scc1 {lab(tag+'_ok')}\n{sleep(1)}\ns_branch {lab(tag+'_spin')}\n{lab(tag+'_ok')}:")
        a(f"v_mov_b32 v{vD}, s51\ns_mov_b32 s46, s56\nds_write_b32 v{vProg}, v{vD}")
    def flush(tag, target):
        a(f"{lab(tag+'_fl')}:\ns_cmp_ge_u32 s49, {target}\ns_cbranch_scc1 {lab(tag+'_fle')}")
        for p in range(4): a(f"v_permlane32_swap_b32 v{ACC+2*p}, v{ACC+2*p+1}")
        a(f"s_lshl_b32 s50, s49, 12\nv_add_u32 v{vT}, s50, v{vOa}")
        for p in range(4): a(f"v_add_f32 v{X+p}, v{ACC+2*p}, v{ACC+2*p+1}")
        for p in range(4): a(f"ds_write_b32 v{vT}, v{X+p} offset:{8*p}")
        for i in range(8): a(f"v_mov_b32 v{ACC+i}, 0")
        a("s_waitcnt lgkmcnt(0)")
        a(f"s_mov_b64 exec, 1\nds_add_u32 v{vFO}, v{vOne}\ns_mov_b64 exec, -1")
        a(f"v_add_u32 v{vFO}, 4, v{vFO}\ns_add_u32 s49, s49, 1\ns_branch {lab(tag+'_fl')}\n{lab(tag+'_fle')}:")

    a("s_mov_b32 s42, 0")
    a(f"{lab('kloop')}:")
    a("s_add_u32 s43, s42, 1\ns_lshr_b32 s44, s43, 3\ns_lshl_b32 s44, s44, 22\ns_and_b32 s45, s43, 7\ns_lshl_b32 s45, s45, 15\ns_add_u32 s44, s44, s45\ns_add_u32 s44, s44, s40")
    body('K', 'K')
    reduceK(False)
    a(f"s_and_b32 s45, s42, 7\ns_cmp_eq_u32 s45, 7\ns_cbranch_scc0 {lab('knoend')}")
    endheadK(False)
    if stamps:
        a(f"s_lshr_b32 s45, s42, 3\ns_add_u32 s45, s45, 1\ns_mov_b32 m0, s45\ns_memrealtime s[98:99]\ns_waitcnt lgkmcnt(0)\nv_writelane_b32 v{vST}, s98, m0")
    a(f"{lab('knoend')}:")
    a(f"s_add_u32 s42, s42, 1\ns_cmp_lt_u32 s42, 31\ns_cbranch_scc1 {lab('kloop')}")
    a("s_mov_b32 s53, 0")
    getdesc("d0", "s53")
    body('K', 'V')
    reduceK(False)
    endheadK(True)
    stamp(4, vST)
    a("s_mov_b32 s47, 0\ns_mov_b32 s49, 0")
    a(f"{lab('vloop')}:")
    a("s_add_u32 s53, s47, 1")
    getdesc("d1", "s53")
    a(f"s_cmp_eq_u32 s46, -1\ns_cbranch_scc1 {lab('vdrain')}")
    body('V', 'V')
    a("s_lshr_b32 s57, s46, 22\ns_sub_u32 s57, s57, s23")
    flush("f1", "s57")
    if stamps:
        a(f"s_cmp_eq_u32 s47, {NSTATIC-1}\ns_cbranch_scc0 {lab('nost5')}")
        stamp(5, vST)
        a(f"{lab('nost5')}:")
    a(f"s_add_u32 s47, s47, 1\ns_branch {lab('vloop')}")
    a(f"{lab('vdrain')}:")
    body('V', None)
    stamp(6, vST)
    flush("f2", "4")
    if stamps:
        a(f"v_writelane_b32 v{vST}, s47, 8")
        stamp(7, vST)
        a(f"s_cmp_eq_u32 s20, 0\ns_cbranch_scc0 {lab('done')}")
        stamp_store(vST, vT, 0)
    a(f"s_branch {lab('done')}")

    a(f"{lab('helpers')}:")
    a(f"s_cmp_eq_u32 s20, 5\ns_cbranch_scc1 {lab('server')}")

    vL16 = 3; vZ = 4; vOne1 = 5; vEa = 6; vBa0 = 7; vBa = 8; vPo = 9; vL4 = 10; vFa0 = 11; vFa = 12; vP = 13; vT1 = 14; vT2 = 15
    vTw = 16; vTr = 17; vFl = 18; vST1 = 19; vOr = 20
    DD = 24
    BB = 40
    AA = 48
    FR = 80
    WA = 112
    XX = 120
    a(f"v_lshlrev_b32 v{vL4}, 2, v2\nv_mov_b32 v{vZ}, 0\nv_add_u32 v{vT1}, {FLAGS}, v{vL4}\nds_write_b32 v{vT1}, v{vZ}")
    a(f"v_lshlrev_b32 v{vL16}, 4, v2\nv_mov_b32 v{vOne1}, 1")
    a("s_waitcnt lgkmcnt(0)\ns_barrier")
    srd(24, 10, 11, 0x100000)
    srd(28, 12, 13, 0x100000)
    srd(32, 18, 19, WS_SIZE)
    srd(36, 14, 15, 32768)
    if stamps: a(f"v_mov_b32 v{vST1}, 0")
    stamp(0, vST1)
    a(f"s_cmp_lg_u32 s22, 0\ns_cbranch_scc1 {lab('noreset')}")
    a(f"v_add_u32 v{vT1}, s23, v2\nv_lshlrev_b32 v{vT1}, 8, v{vT1}\nv_add_u32 v{vT1}, {C_OFF}, v{vT1}")
    a(f"s_lshl_b32 s40, s21, 8\ns_add_u32 s40, s40, {T_OFF}\nv_mov_b32 v{vT2}, s40")
    a(f"v_cmp_gt_u32 vcc, 4, v2\ns_nop 1\nv_cndmask_b32 v{vT1}, v{vT2}, v{vT1}, vcc")
    for i in range(4): a(f"v_mov_b32 v{DD+i}, 0")
    a(f"s_mov_b64 exec, 0x1f\nbuffer_store_dwordx4 {vr(DD,4)}, v{vT1}, s[32:35], 0 offen sc1\ns_mov_b64 exec, -1")
    a(f"{lab('noreset')}:")
    def dma(tag, srdname, base, row):
        a(f"s_mov_b32 s40, {base}\ns_lshl_b32 s41, s22, 10\ns_mov_b32 s42, 64\n{lab(tag)}:")
        a(f"s_mov_b32 m0, s40\ns_add_u32 s40, s40, {row}\nbuffer_load_dwordx4 v{vL16}, {srdname}, s41 offen lds")
        a(f"s_add_u32 s41, s41, 16384\ns_waitcnt vmcnt(15)\ns_sub_u32 s42, s42, 1\ns_cmp_lg_u32 s42, 0\ns_cbranch_scc1 {lab(tag)}")
    dma("edma", "s[24:27]", E_BASE, E_ROW)
    dma("fdma", "s[28:31]", F_BASE, 1024)
    a(f"v_and_b32 v{vT1}, 15, v2\nv_mul_u32_u24 v{vEa}, {E_ROW}, v{vT1}\nv_lshrrev_b32 v{vT2}, 4, v2\nv_lshlrev_b32 v{vPo}, 4, v{vT2}\nv_add_u32 v{vEa}, v{vEa}, v{vPo}")
    a(f"v_and_b32 v{vT1}, 1, v2\nv_lshlrev_b32 v{vT1}, 10, v{vT1}\nv_add_u32 v{vBa0}, v{vT1}, v{vPo}\nv_add_u32 v{vBa0}, {S_BASE}, v{vBa0}")
    a(f"v_add_u32 v{vFa0}, {F_BASE}, v{vL16}")
    a(f"v_lshlrev_b32 v{vTw}, 5, v2\nv_add_u32 v{vTw}, {T_BASE}, v{vTw}")
    a(f"v_lshrrev_b32 v{vT1}, 3, v2\nv_lshlrev_b32 v{vT1}, 8, v{vT1}\nv_and_b32 v{vT2}, 7, v2\nv_lshlrev_b32 v{vT2}, 2, v{vT2}\nv_add_u32 v{vTr}, v{vT1}, v{vT2}\nv_add_u32 v{vTr}, {T_BASE}, v{vTr}")
    a(f"v_add_u32 v{vOr}, {O_BASE}, v{vL16}")
    stamp(1, vST1)

    def ldswait(tag, addr_sgpr, target, slp):
        a(f"v_mov_b32 v{vFl}, {addr_sgpr}")
        a(f"{lab(tag)}:\nds_read_b32 v{vT1}, v{vFl}\ns_waitcnt lgkmcnt(0)\nv_readfirstlane_b32 s50, v{vT1}\ns_cmp_ge_u32 s50, {target}\ns_cbranch_scc1 {lab(tag+'_ok')}\n{sleep(slp)}\ns_branch {lab(tag)}\n{lab(tag+'_ok')}:")
    def wave_reduce(op, v, t1, t2):
        for ror in (8, 4, 2, 1):
            a(f"s_nop 1\n{op}_dpp v{v}, v{v}, v{v} row_ror:{ror} row_mask:0xf bank_mask:0xf")
        a(f"v_mov_b32 v{t1}, v{v}\nv_mov_b32 v{t2}, v{v}\ns_nop 1\nv_permlane16_swap_b32 v{t1}, v{t2}\n{op} v{v}, v{t1}, v{t2}")
        a(f"s_nop 0\nv_mov_b32 v{t1}, v{v}\nv_mov_b32 v{t2}, v{v}\ns_nop 1\nv_permlane32_swap_b32 v{t1}, v{t2}\n{op} v{v}, v{t1}, v{t2}")

    a("s_mov_b32 s42, 0")
    a(f"{lab('gloop')}:")
    a(f"s_lshl_b32 s43, s42, 2\ns_add_u32 s43, s43, {FL_K}")
    ldswait("wk", "s43", 4, 8)
    a("s_waitcnt vmcnt(0)")
    a("s_add_u32 s44, s23, s42")
    a(f"s_lshl_b32 s43, s42, 11\nv_add_u32 v{vBa}, s43, v{vBa0}")
    def s_reads(ks):
        p = ks & 1
        a(f"ds_read_b128 {vr(BB+4*p,4)}, v{vBa} offset:{ks*64}")
        for tl in range(4):
            a(f"ds_read_b128 {vr(AA+16*p+4*tl,4)}, v{vEa} offset:{tl*16*E_ROW+ks*64}")
    s_reads(0)
    for ks in range(16):
        p = ks & 1
        if ks + 1 < 16:
            s_reads(ks + 1)
            a("s_waitcnt lgkmcnt(5)")
        else:
            a("s_waitcnt lgkmcnt(0)")
        for tl in range(4):
            c = "0" if ks == 0 else vr(DD+4*tl, 4)
            a(f"v_mfma_f32_16x16x32_bf16 {vr(DD+4*tl,4)}, {vr(AA+16*p+4*tl,4)}, {vr(BB+4*p,4)}, {c}")
    a("s_nop 7\ns_nop 1")
    for i in range(16):
        a(f"v_add_f32_dpp v{DD+i}, v{DD+i}, v{DD+i} quad_perm:[1,0,3,2] row_mask:0xf bank_mask:0xf")
    a(f"s_lshl_b32 s45, s44, 12\ns_lshl_b32 s46, s22, 8\ns_add_u32 s45, s45, s46\ns_add_u32 s45, s45, {P_OFF}")
    a("s_mov_b32 s46, 0x00010001\ns_mov_b32 s47, 0x00010001\ns_mov_b64 exec, s[46:47]")
    for tl in range(4):
        a(f"buffer_store_dwordx4 {vr(DD+4*tl,4)}, v{vPo}, s[32:35], s45 offen offset:{tl*64} sc1")
    a("s_mov_b64 exec, -1")
    a(f"s_lshl_b32 s46, s21, 4\ns_lshl_b32 s47, s44, 8\ns_add_u32 s47, s47, {C_OFF}")
    a("s_cmp_eq_u32 s42, 0\ns_cselect_b32 s48, s16, s18\ns_cselect_b32 s49, s17, s19\ns_cselect_b32 s46, s46, s47")
    a("s_add_u32 s48, s48, s46\ns_addc_u32 s49, s49, 0")
    a("s_waitcnt vmcnt(0)")
    a(f"s_mov_b64 exec, 1\nglobal_atomic_add v{vZ}, v{vOne1}, s[48:49]\ns_mov_b64 exec, -1")
    if stamps:
        a(f"s_lshl_b32 s45, s42, 2\ns_add_u32 s45, s45, 2\ns_mov_b32 m0, s45\ns_memrealtime s[98:99]\ns_waitcnt lgkmcnt(0)\nv_writelane_b32 v{vST1}, s98, m0")
    a(f"{lab('pollS')}:\nglobal_load_dword v{vT1}, v{vZ}, s[48:49] sc1\ns_waitcnt vmcnt(0)\nv_readfirstlane_b32 s50, v{vT1}\ns_cmp_ge_u32 s50, 16\ns_cbranch_scc1 {lab('pollS_ok')}\n{sleep(16)}\ns_branch {lab('pollS')}\n{lab('pollS_ok')}:")
    if stamps:
        a(f"s_lshl_b32 s45, s42, 2\ns_add_u32 s45, s45, 3\ns_mov_b32 m0, s45\ns_memrealtime s[98:99]\ns_waitcnt lgkmcnt(0)\nv_writelane_b32 v{vST1}, s98, m0")
    a(f"v_mov_b32 v{vFl}, {FL_R}\nds_write_b32 v{vFl}, v{vOne1}")
    a(f"s_lshl_b32 s45, s44, 12\ns_add_u32 s45, s45, {P_OFF}")
    for jj in range(16):
        a(f"buffer_load_dword v{AA+jj}, v{vL4}, s[32:35], s45 offen offset:{jj*256} sc1")
    a("s_waitcnt vmcnt(0)")
    for st in (8, 4, 2, 1):
        for i in range(st): a(f"v_add_f32 v{AA+i}, v{AA+i}, v{AA+i+st}")
    a(f"v_mul_f32 v{vP}, 0x3db8aa3b, v{AA}")
    a(f"v_mov_b32 v{AA+1}, v{vP}")
    wave_reduce("v_max_f32", AA + 1, AA + 2, AA + 3)
    a(f"v_sub_f32 v{vP}, v{vP}, v{AA+1}\nv_exp_f32 v{vP}, v{vP}\ns_nop 0\nv_mov_b32 v{AA+1}, v{vP}")
    wave_reduce("v_add_f32", AA + 1, AA + 2, AA + 3)
    a(f"v_rcp_f32 v{AA+1}, v{AA+1}\ns_nop 0\nv_mul_f32 v{vP}, v{vP}, v{AA+1}")
    for i in range(8): a(f"v_mov_b32 v{WA+i}, 0")
    a(f"v_mov_b32 v{vFa}, v{vFa0}\ns_mov_b32 s60, 0")
    a(f"{lab('wloop')}:")
    for i in range(8): a(f"ds_read_b128 {vr(FR+4*i,4)}, v{vFa} offset:{i*1024}")
    for i in range(16):
        a(f"s_add_u32 s61, s60, {i}\nv_readlane_b32 s{64+i}, v{vP}, s61")
    for i in range(16):
        slot = i % 8
        a(f"s_waitcnt lgkmcnt({7 if i < 9 else 15 - i})")
        for c in range(4):
            a(f"v_lshlrev_b32 v{XX+2*c}, 16, v{FR+4*slot+c}\nv_and_b32 v{XX+2*c+1}, 0xffff0000, v{FR+4*slot+c}")
        if i < 8: a(f"ds_read_b128 {vr(FR+4*slot,4)}, v{vFa} offset:{(i+8)*1024}")
        for c in range(8): a(f"v_fmac_f32 v{WA+c}, s{64+i}, v{XX+c}")
    a(f"v_add_u32 v{vFa}, 16384, v{vFa}\ns_add_u32 s60, s60, 16\ns_cmp_lt_u32 s60, 64\ns_cbranch_scc1 {lab('wloop')}")
    a(f"ds_write_b128 v{vTw}, {vr(WA,4)}\nds_write_b128 v{vTw}, {vr(WA+4,4)} offset:16\ns_waitcnt lgkmcnt(0)")
    for b in range(0, 8, 2):
        a(f"ds_read2_b32 {vr(XX+b,2)}, v{vTr} offset0:{b*8} offset1:{(b+1)*8}")
    a(f"s_lshl_b32 s45, s44, 15\ns_lshl_b32 s46, s22, 11\ns_add_u32 s45, s45, s46\ns_add_u32 s45, s45, {W_OFF}")
    a(f"v_lshlrev_b32 v{vT1}, 5, v2\ns_waitcnt lgkmcnt(0)")
    a(f"buffer_store_dwordx4 {vr(XX,4)}, v{vT1}, s[32:35], s45 offen sc1\nbuffer_store_dwordx4 {vr(XX+4,4)}, v{vT1}, s[32:35], s45 offen offset:16 sc1")
    a(f"s_lshl_b32 s45, s44, 8\ns_add_u32 s45, s45, {C_OFF}\ns_waitcnt vmcnt(0)")
    a(f"s_mov_b64 exec, 1\nbuffer_atomic_add v{vOne1}, v{vZ}, s[32:35], s45 offen offset:4\ns_mov_b64 exec, -1")
    if stamps:
        a(f"s_lshl_b32 s45, s42, 2\ns_add_u32 s45, s45, 4\ns_mov_b32 m0, s45\ns_memrealtime s[98:99]\ns_waitcnt lgkmcnt(0)\nv_writelane_b32 v{vST1}, s98, m0")
    a(f"s_add_u32 s42, s42, 1\ns_cmp_lt_u32 s42, 4\ns_cbranch_scc1 {lab('gloop')}")

    a("s_mov_b32 s42, 0")
    a(f"{lab('oloop')}:")
    a(f"s_lshl_b32 s43, s42, 2\ns_add_u32 s43, s43, {FL_O}")
    ldswait("wo", "s43", 4, 1)
    a(f"s_add_u32 s44, s23, s42\ns_lshl_b32 s43, s42, 12\nv_add_u32 v{vT1}, s43, v{vOr}")
    for w in range(4): a(f"ds_read_b128 {vr(AA+4*w,4)}, v{vT1} offset:{w*1024}")
    a("s_waitcnt lgkmcnt(0)")
    for i in range(4): a(f"v_add_f32 v{AA+i}, v{AA+i}, v{AA+4+i}\nv_add_f32 v{AA+8+i}, v{AA+8+i}, v{AA+12+i}")
    for i in range(4): a(f"v_add_f32 v{AA+i}, v{AA+i}, v{AA+8+i}")
    a(f"s_lshl_b32 s45, s44, 14\ns_add_u32 s45, s45, {O_OFF}\ns_lshl_b32 s46, s22, 10\ns_add_u32 s46, s46, s45")
    a(f"buffer_store_dwordx4 {vr(AA,4)}, v{vL16}, s[32:35], s46 offen sc1")
    a(f"s_lshl_b32 s47, s44, 8\ns_add_u32 s47, s47, {C_OFF}\nv_mov_b32 v{vT2}, 1\ns_waitcnt vmcnt(0)")
    a(f"s_mov_b64 exec, 1\nbuffer_atomic_add v{vT2}, v{vZ}, s[32:35], s47 offen offset:8 sc0\ns_mov_b64 exec, -1\ns_waitcnt vmcnt(0)\nv_readfirstlane_b32 s50, v{vT2}")
    a(f"s_cmp_eq_u32 s50, 15\ns_cbranch_scc0 {lab('notlast')}")
    for jj in range(16):
        if jj % 4 == 0 and jj: a("s_add_u32 s45, s45, 4096")
        a(f"buffer_load_dwordx4 {vr(AA+4*jj,4)}, v{vL16}, s[32:35], s45 offen offset:{(jj%4)*1024} sc1")
    a("s_waitcnt vmcnt(0)")
    for st in (8, 4, 2, 1):
        for k in range(st):
            for i in range(4): a(f"v_add_f32 v{AA+4*k+i}, v{AA+4*k+i}, v{AA+4*(k+st)+i}")
    a(f"v_cvt_pk_bf16_f32 v{AA+4}, v{AA}, v{AA+1}\nv_cvt_pk_bf16_f32 v{AA+5}, v{AA+2}, v{AA+3}")
    a(f"v_lshlrev_b32 v{vT1}, 3, v2\ns_lshl_b32 s45, s44, 9")
    a(f"buffer_store_dwordx2 {vr(AA+4,2)}, v{vT1}, s[36:39], s45 offen")
    a(f"{lab('notlast')}:")
    if stamps:
        a(f"s_add_u32 s45, s42, 20\ns_mov_b32 m0, s45\ns_memrealtime s[98:99]\ns_waitcnt lgkmcnt(0)\nv_writelane_b32 v{vST1}, s98, m0")
    a(f"s_add_u32 s42, s42, 1\ns_cmp_lt_u32 s42, 4\ns_cbranch_scc1 {lab('oloop')}")
    if stamps:
        a("s_waitcnt vmcnt(0)")
        stamp(24, vST1)
        stamp_store(vST1, vT1, 1)
    a(f"s_branch {lab('done')}")

    a(f"{lab('server')}:")
    vZ2 = 4; vTk = 5; vPg = 6; vX = 8; vDd = 12; vDa = 14; vST2 = 15
    a("s_waitcnt lgkmcnt(0)\ns_barrier")
    srd(32, 18, 19, WS_SIZE)
    a(f"v_mov_b32 v{vZ2}, 0\nv_mov_b32 v{vPg}, {FL_PROG}")
    if stamps: a(f"v_mov_b32 v{vST2}, 0")
    a(f"v_mov_b32 v{vDa}, {FL_R}")
    a(f"{lab('wr')}:\nds_read_b32 v{vX}, v{vDa}\ns_waitcnt lgkmcnt(0)\nv_readfirstlane_b32 s50, v{vX}\ns_cmp_ge_u32 s50, 1\ns_cbranch_scc1 {lab('wr_ok')}\n{sleep(16)}\ns_branch {lab('wr')}\n{lab('wr_ok')}:")
    a(f"s_mov_b32 s40, 0\ns_mov_b32 s41, 0\ns_lshl_b32 s42, s21, 8\ns_add_u32 s42, s42, {T_OFF}")
    a(f"{lab('sloop')}:")
    a(f"{lab('thr')}:\nds_read_b128 {vr(vX,4)}, v{vPg}\ns_waitcnt lgkmcnt(0)\nv_min_u32 v{vX}, v{vX}, v{vX+1}\nv_min_u32 v{vX+2}, v{vX+2}, v{vX+3}\nv_min_u32 v{vX}, v{vX}, v{vX+2}\ns_nop 0\nv_readfirstlane_b32 s43, v{vX}")
    a(f"s_sub_u32 s43, s40, s43\ns_cmp_lt_i32 s43, {D}\ns_cbranch_scc1 {lab('go')}\n{sleep(2)}\ns_branch {lab('thr')}\n{lab('go')}:")
    a(f"s_cmp_lt_u32 s40, {NSTATIC}\ns_cbranch_scc0 {lab('dyn')}")
    a("s_lshr_b32 s44, s40, 3\ns_and_b32 s45, s40, 7\ns_lshl_b32 s45, s45, 15\ns_lshl_b32 s46, s22, 18\ns_add_u32 s45, s45, s46")
    a(f"s_branch {lab('have')}")
    a(f"{lab('dyn')}:\nv_mov_b32 v{vTk}, 1\ns_mov_b64 exec, 1\nbuffer_atomic_add v{vTk}, v{vZ2}, s[32:35], s42 offen sc0\ns_mov_b64 exec, -1\ns_waitcnt vmcnt(0)\nv_readfirstlane_b32 s45, v{vTk}")
    a(f"s_cmp_ge_u32 s45, {NDYN}\ns_cbranch_scc1 {lab('send')}")
    a(f"s_lshr_b32 s44, s45, 7\ns_add_u32 s44, s44, {GDYN0}\ns_and_b32 s45, s45, 127\ns_lshl_b32 s45, s45, 15")
    a(f"{lab('have')}:")
    a(f"{lab('wrdy')}:\ns_cmp_gt_u32 s41, s44\ns_cbranch_scc1 {lab('wrdy_ok')}")
    a(f"s_add_u32 s46, s23, s41\ns_lshl_b32 s46, s46, 8\ns_add_u32 s46, s46, {C_OFF}")
    a(f"{lab('pollW')}:\nbuffer_load_dword v{vX}, v{vZ2}, s[32:35], s46 offen offset:4 sc1\ns_waitcnt vmcnt(0)\nv_readfirstlane_b32 s47, v{vX}\ns_cmp_ge_u32 s47, 16\ns_cbranch_scc1 {lab('pollW_ok')}\n{sleep(16)}\ns_branch {lab('pollW')}\n{lab('pollW_ok')}:")
    if stamps:
        a(f"s_mov_b32 m0, s41\ns_memrealtime s[98:99]\ns_waitcnt lgkmcnt(0)\nv_writelane_b32 v{vST2}, s98, m0")
    a(f"s_add_u32 s41, s41, 1\ns_branch {lab('wrdy')}\n{lab('wrdy_ok')}:")
    a("s_add_u32 s46, s23, s44\ns_lshl_b32 s46, s46, 22\ns_add_u32 s45, s45, s46")
    a(f"{lab('pub')}:")
    a(f"s_and_b32 s43, s40, {Q-1}\ns_lshl_b32 s43, s43, 3\ns_add_u32 s43, s43, {FL_DESC}\nv_mov_b32 v{vDa}, s43\ns_add_u32 s40, s40, 1\nv_mov_b32 v{vDd}, s45\nv_mov_b32 v{vDd+1}, s40")
    a(f"s_mov_b64 exec, 1\nds_write_b64 v{vDa}, {vr(vDd,2)}\ns_mov_b64 exec, -1")
    a(f"s_cmp_eq_u32 s45, -1\ns_cbranch_scc0 {lab('sloop')}\ns_waitcnt lgkmcnt(0)")
    if stamps:
        stamp(8, vST2)
        stamp_store(vST2, vX, 2)
    a(f"s_branch {lab('done')}")
    a(f"{lab('send')}:\ns_mov_b32 s45, -1\ns_branch {lab('pub')}")
    a(f"{lab('done')}:\ns_endpgm")

    head = f"""; Linformer low-rank-projection attention, decode step (B=4 H=16 Sq=1 Skv=8192 Dh=256 R=64), gfx950.
; @launch grid=(256,1,1) block=(384,1,1) lds={LDS_BYTES}
.amdgcn_target "amdgcn-amd-amdhsa--gfx950"
.text
.globl {N}
.p2align 8
.type {N},@function
"""
    tail = f"""
.section .rodata,"a"
.p2align 6
.amdhsa_kernel {N}
  .amdhsa_next_free_vgpr 128
  .amdhsa_next_free_sgpr 102
  .amdhsa_accum_offset 128
  .amdhsa_group_segment_fixed_size 0
  .amdhsa_kernarg_size 64
  .amdhsa_user_sgpr_count 2
  .amdhsa_user_sgpr_kernarg_segment_ptr 1
  .amdhsa_system_sgpr_workgroup_id_x 1
.end_amdhsa_kernel
"""
    return head + a.text() + tail

if __name__ == "__main__":
    out = sys.argv[1]
    kw = eval("dict(%s)" % (sys.argv[2] if len(sys.argv) > 2 else ""))
    open(out, "w").write(gen(**kw))
    import build
    print(build.build(out))
```

```python
import sys

KNAME = "standalone__low_rank_proj_linformer__decode_kernel"

P_OFF = 0x000000
W_OFF = 0x100000
O_OFF = 0x400000
C_OFF = 0x600000
T_OFF = 0x610000
ST_OFF = 0x700000
WS_SIZE = 0x800000

E_BASE, E_ROW = 0, 1040
F_BASE = 66560
S_BASE = 132096
O_BASE = 140288
T_BASE = 156672
FLAGS = 158720
FL_K, FL_O, FL_PROG, FL_R, FL_DESC = FLAGS, FLAGS + 16, FLAGS + 32, FLAGS + 48, FLAGS + 64
LDS_BYTES = 160000
Q = 8

class A:
    def __init__(self): self.l = []
    def __call__(self, s):
        for x in s.split("\n"):
            x = x.strip()
            if x: self.l.append(("" if x.endswith(":") else "  ") + x)
    def text(self): return "\n".join(self.l)

def vr(b, n=1): return f"v{b}" if n == 1 else f"v[{b}:{b+n-1}]"
def sr(b, n=1): return f"s{b}" if n == 1 else f"s[{b}:{b+n-1}]"

def gen(D=2, NSTATIC=16, stamps=False, guard=False, dbgtime=False, kflags="nt", vflags="nt"):
    a = A()
    N = KNAME
    NDYN = 512 - 16 * NSTATIC
    assert NSTATIC % 8 == 0 and NSTATIC in (0, 8, 16, 24, 32)
    GDYN0 = NSTATIC // 8
    lab = lambda s: f"L_{s}"

    def sleep(n):
        g = f"\ns_add_u32 s97, s97, 1\ns_cmp_gt_u32 s97, 0x40000\ns_cbranch_scc1 {lab('done')}" if guard else ""
        return f"s_sleep {n}" + g
    def srd(base, plo, phi, size):
        a(f"s_mov_b32 s{base}, s{plo}\ns_and_b32 s{base+1}, s{phi}, 0xffff\ns_mov_b32 s{base+2}, {size}\ns_mov_b32 s{base+3}, 0x20000")

    def stamp(idx, vst):
        if stamps:
            a(f"s_memrealtime s[98:99]\ns_waitcnt lgkmcnt(0)\nv_writelane_b32 v{vst}, s98, {idx}")

    def stamp_store(vst, vtmp, slot):
        if stamps:
            a(f"s_lshl_b32 s98, s2, 3\ns_add_u32 s98, s98, {slot}\ns_lshl_b32 s98, s98, 8\ns_add_u32 s98, s98, {ST_OFF}")
            a(f"v_mbcnt_lo_u32_b32 v{vtmp}, -1, 0\nv_mbcnt_hi_u32_b32 v{vtmp}, -1, v{vtmp}\nv_lshlrev_b32 v{vtmp}, 2, v{vtmp}")
            a(f"buffer_store_dword v{vst}, v{vtmp}, s[32:35], s98 offen\ns_waitcnt vmcnt(0)")

    a(f"{N}:")
    a(f"s_cmp_ge_u32 s2, 256\ns_cbranch_scc1 {lab('done')}")
    a("s_load_dwordx16 s[4:19], s[0:1], 0")
    if guard: a("s_mov_b32 s97, 0")
    a("v_lshrrev_b32 v1, 6, v0\nv_and_b32 v2, 63, v0")
    a("s_and_b32 s3, s2, 7\ns_lshr_b32 s24, s2, 3")
    a("v_readfirstlane_b32 s20, v1")
    a("s_and_b32 s21, s24, 15\ns_lshr_b32 s24, s24, 4\ns_lshl_b32 s24, s24, 3\ns_add_u32 s22, s24, s3\ns_lshl_b32 s23, s21, 2")
    a(f"s_cmp_ge_u32 s20, 4\ns_cbranch_scc1 {lab('helpers')}")

    vOff = 4; R = 12; Qr = 44; Aa = 60; TMP = 68; vSa = 76; vFK = 77
    ACC = 80; WC = 88; WN = 96; vWoff = 104; vOa = 105; vProg = 106; vD = 108; vOne = 110; vST = 111; vT = 112; vFO = 113
    X = 60
    a(f"v_and_b32 v3, 31, v2\nv_lshlrev_b32 v3, 4, v3")
    a(f"s_lshl_b32 s25, s20, 10\nv_lshlrev_b32 v{vOff}, 4, v2\nv_add_u32 v{vOff}, s25, v{vOff}")
    for t in range(1, 8):
        a(f"v_add_u32 v{vOff+t}, {t*4096}, v{vOff}")
    a(f"s_lshl_b32 s40, s23, 22\ns_lshl_b32 s41, s22, 18\ns_add_u32 s40, s40, s41")
    a(f"s_lshl_b32 s41, s23, 9")
    a("s_waitcnt lgkmcnt(0)")
    srd(36, 4, 5, 32768)
    srd(24, 6, 7, 0x10000000)
    for g in range(4):
        a(f"buffer_load_dwordx4 {vr(Qr+4*g,4)}, v3, s[36:39], s41 offen offset:{g*512}")
    for t in range(8):
        a(f"buffer_load_dwordx4 {vr(R+4*t,4)}, v{vOff+t}, s[24:27], s40 offen {kflags}")
    srd(28, 8, 9, 0x10000000)
    srd(32, 18, 19, WS_SIZE)
    if stamps:
        a(f"v_mov_b32 v{vST}, 0")
    stamp(0, vST)
    a(f"v_and_b32 v{vSa}, 16, v2")
    a(f"v_and_b32 v{TMP}, 8, v2\nv_lshlrev_b32 v{TMP}, 2, v{TMP}\nv_add_u32 v{vSa}, v{vSa}, v{TMP}")
    a(f"v_and_b32 v{TMP}, 4, v2\nv_lshlrev_b32 v{TMP}, 4, v{TMP}\nv_add_u32 v{vSa}, v{vSa}, v{TMP}")
    a(f"v_lshrrev_b32 v{TMP}, 4, v2\nv_and_b32 v{TMP}, 2, v{TMP}\nv_add_u32 v{vSa}, v{vSa}, v{TMP}")
    a(f"s_lshl_b32 s42, s20, 2\ns_add_u32 s42, s42, {S_BASE}\nv_add_u32 v{vSa}, s42, v{vSa}")
    a(f"v_mov_b32 v{vFK}, {FL_K}\nv_mov_b32 v{vFO}, {FL_O}\nv_mov_b32 v{vOne}, 1")
    a(f"v_lshrrev_b32 v{vWoff}, 5, v2\nv_lshlrev_b32 v{vWoff}, 5, v{vWoff}\ns_lshl_b32 s42, s20, 6\nv_add_u32 v{vWoff}, s42, v{vWoff}")
    a(f"v_and_b32 v{vOa}, 31, v2\nv_lshlrev_b32 v{vOa}, 5, v{vOa}\nv_lshrrev_b32 v{TMP}, 5, v2\nv_lshlrev_b32 v{TMP}, 2, v{TMP}\nv_add_u32 v{vOa}, v{vOa}, v{TMP}")
    a(f"s_lshl_b32 s42, s20, 10\ns_add_u32 s42, s42, {O_BASE}\nv_add_u32 v{vOa}, s42, v{vOa}")
    a(f"s_lshl_b32 s42, s20, 2\ns_add_u32 s42, s42, {FL_PROG}\nv_mov_b32 v{vProg}, s42")
    a("s_mov_b32 s55, 0xffff0000")
    for i in range(8): a(f"v_mov_b32 v{ACC+i}, 0")
    a("s_barrier")

    def consumeK(t):
        r = R + 4 * t
        a(f"v_dot2_f32_bf16 v{Aa+t}, v{r}, v{Qr}, 0")
        for i in range(1, 4):
            a(f"v_dot2_f32_bf16 v{Aa+t}, v{r+i}, v{Qr+i}, v{Aa+t}")
    def consumeV(t):
        r = R + 4 * t
        for i in range(4):
            a(f"v_lshlrev_b32 v{X+2*i}, 16, v{r+i}\nv_and_b32 v{X+2*i+1}, s55, v{r+i}")
        wp = WC + (t & ~1)
        sel = "op_sel_hi:[1,0,1]" if t % 2 == 0 else "op_sel:[0,1,0] op_sel_hi:[1,1,1]"
        for i in range(4):
            a(f"v_pk_fma_f32 {vr(ACC+2*i,2)}, {vr(X+2*i,2)}, {vr(wp,2)}, {vr(ACC+2*i,2)} {sel}")
    def body(consume, issue):
        if issue == 'V':
            a(f"s_lshr_b32 s54, s46, 7\ns_add_u32 s54, s54, {W_OFF}")
        for t in range(8):
            if t == 0: cnt = 7
            elif issue == 'V': cnt = 9
            elif issue == 'K': cnt = 7
            else: cnt = 7 - t
            a(f"s_waitcnt vmcnt({cnt})")
            if t == 0:
                if consume == 'V':
                    for i in range(8): a(f"v_mov_b32 v{WC+i}, v{WN+i}")
                if issue == 'V':
                    a(f"buffer_load_dwordx4 {vr(WN,4)}, v{vWoff}, s[32:35], s54 offen sc1")
                    a(f"buffer_load_dwordx4 {vr(WN+4,4)}, v{vWoff}, s[32:35], s54 offen offset:16 sc1")
            (consumeK if consume == 'K' else consumeV)(t)
            r = R + 4 * t
            if issue == 'K':
                a(f"buffer_load_dwordx4 {vr(r,4)}, v{vOff+t}, s[24:27], s44 offen {kflags}")
            elif issue == 'V':
                a(f"buffer_load_dwordx4 {vr(r,4)}, v{vOff+t}, s[28:31], s46 offen {vflags}")
    def reduceK(nop_first):
        A0 = Aa
        if nop_first: a("s_nop 2")
        for p in range(4): a(f"v_permlane16_swap_b32 v{A0+2*p}, v{A0+2*p+1}")
        for p in range(4): a(f"v_add_f32 v{TMP+p}, v{A0+2*p}, v{A0+2*p+1}")
        c0, c1, d = TMP + 4, TMP + 5, TMP + 6
        a(f"v_add_f32_dpp v{c0}, v{TMP}, v{TMP} row_ror:8 row_mask:0xf bank_mask:0x3")
        a(f"v_add_f32_dpp v{c0}, v{TMP+1}, v{TMP+1} row_ror:8 row_mask:0xf bank_mask:0xc")
        a(f"v_add_f32_dpp v{c1}, v{TMP+2}, v{TMP+2} row_ror:8 row_mask:0xf bank_mask:0x3")
        a(f"v_add_f32_dpp v{c1}, v{TMP+3}, v{TMP+3} row_ror:8 row_mask:0xf bank_mask:0xc")
        a("s_nop 0")
        a(f"v_add_f32_dpp v{d}, v{c0}, v{c0} row_half_mirror row_mask:0xf bank_mask:0x5")
        a(f"v_add_f32_dpp v{d}, v{c1}, v{c1} row_half_mirror row_mask:0xf bank_mask:0xa")
        a("s_nop 1")
        a(f"v_add_f32_dpp v{d}, v{d}, v{d} quad_perm:[1,0,3,2] row_mask:0xf bank_mask:0xf")
        a("s_nop 1")
        a(f"v_add_f32_dpp v{d}, v{d}, v{d} quad_perm:[2,3,0,1] row_mask:0xf bank_mask:0xf")
        a(f"v_cvt_pk_bf16_f32 v{c0}, v{d}, v{d}")
        a(f"v_lshlrev_b32 v{c1}, 16, v{c0}")
        a(f"ds_write_b16 v{vSa}, v{c0}")
        a(f"v_sub_f32 v{c1}, v{d}, v{c1}")
        a(f"v_cvt_pk_bf16_f32 v{TMP}, v{c1}, v{c1}")
        a(f"ds_write_b16 v{vSa}, v{TMP} offset:1024")
        a(f"v_add_u32 v{vSa}, 128, v{vSa}")
    def endheadK(last):
        a("s_waitcnt lgkmcnt(0)")
        a(f"s_mov_b64 exec, 1\nds_add_u32 v{vFK}, v{vOne}\ns_mov_b64 exec, -1")
        if not last:
            a(f"v_add_u32 v{vFK}, 4, v{vFK}\nv_add_u32 v{vSa}, 1024, v{vSa}")
            for i in range(12): a(f"v_mov_b32 v{Qr+i}, v{Qr+4+i}")
    def getdesc(tag, idx):
        a(f"s_and_b32 s50, {idx}, {Q-1}\ns_lshl_b32 s50, s50, 3\ns_add_u32 s50, s50, {FL_DESC}\nv_mov_b32 v{vT}, s50\ns_add_u32 s51, {idx}, 1")
        a(f"{lab(tag+'_spin')}:\nds_read_b64 {vr(vD,2)}, v{vT}\ns_waitcnt lgkmcnt(0)\nv_readfirstlane_b32 s56, v{vD}\nv_readfirstlane_b32 s52, v{vD+1}")
        a(f"s_cmp_eq_u32 s52, s51\ns_cbranch_scc1 {lab(tag+'_ok')}\n{sleep(1)}\ns_branch {lab(tag+'_spin')}\n{lab(tag+'_ok')}:")
        a(f"v_mov_b32 v{vD}, s51\ns_mov_b32 s46, s56\nds_write_b32 v{vProg}, v{vD}")
    def flush(tag, target):
        a(f"{lab(tag+'_fl')}:\ns_cmp_ge_u32 s49, {target}\ns_cbranch_scc1 {lab(tag+'_fle')}")
        for p in range(4): a(f"v_permlane32_swap_b32 v{ACC+2*p}, v{ACC+2*p+1}")
        a(f"s_lshl_b32 s50, s49, 12\nv_add_u32 v{vT}, s50, v{vOa}")
        for p in range(4): a(f"v_add_f32 v{X+p}, v{ACC+2*p}, v{ACC+2*p+1}")
        for p in range(4): a(f"ds_write_b32 v{vT}, v{X+p} offset:{8*p}")
        for i in range(8): a(f"v_mov_b32 v{ACC+i}, 0")
        a("s_waitcnt lgkmcnt(0)")
        a(f"s_mov_b64 exec, 1\nds_add_u32 v{vFO}, v{vOne}\ns_mov_b64 exec, -1")
        a(f"v_add_u32 v{vFO}, 4, v{vFO}\ns_add_u32 s49, s49, 1\ns_branch {lab(tag+'_fl')}\n{lab(tag+'_fle')}:")

    a("s_mov_b32 s42, 0")
    a(f"{lab('kloop')}:")
    a("s_add_u32 s43, s42, 1\ns_lshr_b32 s44, s43, 3\ns_lshl_b32 s44, s44, 22\ns_and_b32 s45, s43, 7\ns_lshl_b32 s45, s45, 15\ns_add_u32 s44, s44, s45\ns_add_u32 s44, s44, s40")
    body('K', 'K')
    reduceK(False)
    a(f"s_and_b32 s45, s42, 7\ns_cmp_eq_u32 s45, 7\ns_cbranch_scc0 {lab('knoend')}")
    endheadK(False)
    if stamps:
        a(f"s_lshr_b32 s45, s42, 3\ns_add_u32 s45, s45, 1\ns_mov_b32 m0, s45\ns_memrealtime s[98:99]\ns_waitcnt lgkmcnt(0)\nv_writelane_b32 v{vST}, s98, m0")
    a(f"{lab('knoend')}:")
    a(f"s_add_u32 s42, s42, 1\ns_cmp_lt_u32 s42, 31\ns_cbranch_scc1 {lab('kloop')}")
    a("s_mov_b32 s53, 0")
    getdesc("d0", "s53")
    body('K', 'V')
    reduceK(False)
    endheadK(True)
    stamp(4, vST)
    a("s_mov_b32 s47, 0\ns_mov_b32 s49, 0")
    a(f"{lab('vloop')}:")
    a("s_add_u32 s53, s47, 1")
    getdesc("d1", "s53")
    a(f"s_cmp_eq_u32 s46, -1\ns_cbranch_scc1 {lab('vdrain')}")
    body('V', 'V')
    a("s_lshr_b32 s57, s46, 22\ns_sub_u32 s57, s57, s23")
    flush("f1", "s57")
    if stamps:
        a(f"s_cmp_eq_u32 s47, {NSTATIC-1}\ns_cbranch_scc0 {lab('nost5')}")
        stamp(5, vST)
        a(f"{lab('nost5')}:")
    a(f"s_add_u32 s47, s47, 1\ns_branch {lab('vloop')}")
    a(f"{lab('vdrain')}:")
    body('V', None)
    stamp(6, vST)
    flush("f2", "4")
    if stamps:
        a(f"v_writelane_b32 v{vST}, s47, 8")
        stamp(7, vST)
        a(f"s_cmp_eq_u32 s20, 0\ns_cbranch_scc0 {lab('done')}")
        stamp_store(vST, vT, 0)
    a(f"s_branch {lab('done')}")

    a(f"{lab('helpers')}:")
    a(f"s_cmp_eq_u32 s20, 5\ns_cbranch_scc1 {lab('server')}")

    vL16 = 3; vZ = 4; vOne1 = 5; vEa = 6; vBa0 = 7; vBa = 8; vPo = 9; vL4 = 10; vFa0 = 11; vFa = 12; vP = 13; vT1 = 14; vT2 = 15
    vTw = 16; vTr = 17; vFl = 18; vST1 = 19; vOr = 20
    DD = 24
    BB = 40
    AA = 48
    FR = 80
    WA = 112
    XX = 120
    a(f"v_lshlrev_b32 v{vL4}, 2, v2\nv_mov_b32 v{vZ}, 0\nv_add_u32 v{vT1}, {FLAGS}, v{vL4}\nds_write_b32 v{vT1}, v{vZ}")
    a(f"v_lshlrev_b32 v{vL16}, 4, v2\nv_mov_b32 v{vOne1}, 1")
    if dbgtime:
        a("s_memrealtime s[98:99]")
    a("s_waitcnt lgkmcnt(0)\ns_barrier")
    if dbgtime:
        a(f"s_not_b32 s98, s98\nv_mov_b32 v{vT1}, s98\ns_mov_b64 exec, 1\nglobal_atomic_umax v{vZ}, v{vT1}, s[16:17] offset:8\ns_mov_b64 exec, -1")
    srd(24, 10, 11, 0x100000)
    srd(28, 12, 13, 0x100000)
    srd(32, 18, 19, WS_SIZE)
    srd(36, 14, 15, 32768)
    if stamps: a(f"v_mov_b32 v{vST1}, 0")
    stamp(0, vST1)
    a(f"s_cmp_lg_u32 s22, 0\ns_cbranch_scc1 {lab('noreset')}")
    a(f"v_add_u32 v{vT1}, s23, v2\nv_lshlrev_b32 v{vT1}, 8, v{vT1}\nv_add_u32 v{vT1}, {C_OFF}, v{vT1}")
    a(f"s_lshl_b32 s40, s21, 8\ns_add_u32 s40, s40, {T_OFF}\nv_mov_b32 v{vT2}, s40")
    a(f"v_cmp_gt_u32 vcc, 4, v2\ns_nop 1\nv_cndmask_b32 v{vT1}, v{vT2}, v{vT1}, vcc")
    for i in range(4): a(f"v_mov_b32 v{DD+i}, 0")
    a(f"s_mov_b64 exec, 0x1f\nbuffer_store_dwordx4 {vr(DD,4)}, v{vT1}, s[32:35], 0 offen sc1\ns_mov_b64 exec, -1")
    a(f"{lab('noreset')}:")
    def dma(tag, srdname, base, row):
        a(f"s_mov_b32 s40, {base}\ns_lshl_b32 s41, s22, 10\ns_mov_b32 s42, 64\n{lab(tag)}:")
        a(f"s_mov_b32 m0, s40\ns_add_u32 s40, s40, {row}\nbuffer_load_dwordx4 v{vL16}, {srdname}, s41 offen lds")
        a(f"s_add_u32 s41, s41, 16384\ns_waitcnt vmcnt(15)\ns_sub_u32 s42, s42, 1\ns_cmp_lg_u32 s42, 0\ns_cbranch_scc1 {lab(tag)}")
    dma("edma", "s[24:27]", E_BASE, E_ROW)
    dma("fdma", "s[28:31]", F_BASE, 1024)
    a(f"v_and_b32 v{vT1}, 15, v2\nv_mul_u32_u24 v{vEa}, {E_ROW}, v{vT1}\nv_lshrrev_b32 v{vT2}, 4, v2\nv_lshlrev_b32 v{vPo}, 4, v{vT2}\nv_add_u32 v{vEa}, v{vEa}, v{vPo}")
    a(f"v_and_b32 v{vT1}, 1, v2\nv_lshlrev_b32 v{vT1}, 10, v{vT1}\nv_add_u32 v{vBa0}, v{vT1}, v{vPo}\nv_add_u32 v{vBa0}, {S_BASE}, v{vBa0}")
    a(f"v_add_u32 v{vFa0}, {F_BASE}, v{vL16}")
    a(f"v_lshlrev_b32 v{vTw}, 5, v2\nv_add_u32 v{vTw}, {T_BASE}, v{vTw}")
    a(f"v_lshrrev_b32 v{vT1}, 3, v2\nv_lshlrev_b32 v{vT1}, 8, v{vT1}\nv_and_b32 v{vT2}, 7, v2\nv_lshlrev_b32 v{vT2}, 2, v{vT2}\nv_add_u32 v{vTr}, v{vT1}, v{vT2}\nv_add_u32 v{vTr}, {T_BASE}, v{vTr}")
    a(f"v_add_u32 v{vOr}, {O_BASE}, v{vL16}")
    stamp(1, vST1)

    def ldswait(tag, addr_sgpr, target, slp):
        a(f"v_mov_b32 v{vFl}, {addr_sgpr}")
        a(f"{lab(tag)}:\nds_read_b32 v{vT1}, v{vFl}\ns_waitcnt lgkmcnt(0)\nv_readfirstlane_b32 s50, v{vT1}\ns_cmp_ge_u32 s50, {target}\ns_cbranch_scc1 {lab(tag+'_ok')}\n{sleep(slp)}\ns_branch {lab(tag)}\n{lab(tag+'_ok')}:")
    def wave_reduce(op, v, t1, t2):
        for ror in (8, 4, 2, 1):
            a(f"s_nop 1\n{op}_dpp v{v}, v{v}, v{v} row_ror:{ror} row_mask:0xf bank_mask:0xf")
        a(f"v_mov_b32 v{t1}, v{v}\nv_mov_b32 v{t2}, v{v}\ns_nop 1\nv_permlane16_swap_b32 v{t1}, v{t2}\n{op} v{v}, v{t1}, v{t2}")
        a(f"s_nop 0\nv_mov_b32 v{t1}, v{v}\nv_mov_b32 v{t2}, v{v}\ns_nop 1\nv_permlane32_swap_b32 v{t1}, v{t2}\n{op} v{v}, v{t1}, v{t2}")

    a("s_mov_b32 s42, 0")
    a(f"{lab('gloop')}:")
    a(f"s_lshl_b32 s43, s42, 2\ns_add_u32 s43, s43, {FL_K}")
    ldswait("wk", "s43", 4, 8)
    a("s_waitcnt vmcnt(0)")
    a("s_add_u32 s44, s23, s42")
    a(f"s_lshl_b32 s43, s42, 11\nv_add_u32 v{vBa}, s43, v{vBa0}")
    def s_reads(ks):
        p = ks & 1
        a(f"ds_read_b128 {vr(BB+4*p,4)}, v{vBa} offset:{ks*64}")
        for tl in range(4):
            a(f"ds_read_b128 {vr(AA+16*p+4*tl,4)}, v{vEa} offset:{tl*16*E_ROW+ks*64}")
    s_reads(0)
    for ks in range(16):
        p = ks & 1
        if ks + 1 < 16:
            s_reads(ks + 1)
            a("s_waitcnt lgkmcnt(5)")
        else:
            a("s_waitcnt lgkmcnt(0)")
        for tl in range(4):
            c = "0" if ks == 0 else vr(DD+4*tl, 4)
            a(f"v_mfma_f32_16x16x32_bf16 {vr(DD+4*tl,4)}, {vr(AA+16*p+4*tl,4)}, {vr(BB+4*p,4)}, {c}")
    a("s_nop 7\ns_nop 1")
    for i in range(16):
        a(f"v_add_f32_dpp v{DD+i}, v{DD+i}, v{DD+i} quad_perm:[1,0,3,2] row_mask:0xf bank_mask:0xf")
    a(f"s_lshl_b32 s45, s44, 12\ns_lshl_b32 s46, s22, 8\ns_add_u32 s45, s45, s46\ns_add_u32 s45, s45, {P_OFF}")
    a("s_mov_b32 s46, 0x00010001\ns_mov_b32 s47, 0x00010001\ns_mov_b64 exec, s[46:47]")
    for tl in range(4):
        a(f"buffer_store_dwordx4 {vr(DD+4*tl,4)}, v{vPo}, s[32:35], s45 offen offset:{tl*64} sc1")
    a("s_mov_b64 exec, -1")
    a(f"s_lshl_b32 s46, s21, 4\ns_lshl_b32 s47, s44, 8\ns_add_u32 s47, s47, {C_OFF}")
    a("s_cmp_eq_u32 s42, 0\ns_cselect_b32 s48, s16, s18\ns_cselect_b32 s49, s17, s19\ns_cselect_b32 s46, s46, s47")
    a("s_add_u32 s48, s48, s46\ns_addc_u32 s49, s49, 0")
    a("s_waitcnt vmcnt(0)")
    a(f"s_mov_b64 exec, 1\nglobal_atomic_add v{vZ}, v{vOne1}, s[48:49]\ns_mov_b64 exec, -1")
    if stamps:
        a(f"s_lshl_b32 s45, s42, 2\ns_add_u32 s45, s45, 2\ns_mov_b32 m0, s45\ns_memrealtime s[98:99]\ns_waitcnt lgkmcnt(0)\nv_writelane_b32 v{vST1}, s98, m0")
    a(f"{lab('pollS')}:\nglobal_load_dword v{vT1}, v{vZ}, s[48:49] sc1\ns_waitcnt vmcnt(0)\nv_readfirstlane_b32 s50, v{vT1}\ns_cmp_ge_u32 s50, 16\ns_cbranch_scc1 {lab('pollS_ok')}\n{sleep(16)}\ns_branch {lab('pollS')}\n{lab('pollS_ok')}:")
    if stamps:
        a(f"s_lshl_b32 s45, s42, 2\ns_add_u32 s45, s45, 3\ns_mov_b32 m0, s45\ns_memrealtime s[98:99]\ns_waitcnt lgkmcnt(0)\nv_writelane_b32 v{vST1}, s98, m0")
    a(f"v_mov_b32 v{vFl}, {FL_R}\nds_write_b32 v{vFl}, v{vOne1}")
    a(f"s_lshl_b32 s45, s44, 12\ns_add_u32 s45, s45, {P_OFF}")
    for jj in range(16):
        a(f"buffer_load_dword v{AA+jj}, v{vL4}, s[32:35], s45 offen offset:{jj*256} sc1")
    a("s_waitcnt vmcnt(0)")
    for st in (8, 4, 2, 1):
        for i in range(st): a(f"v_add_f32 v{AA+i}, v{AA+i}, v{AA+i+st}")
    a(f"v_mul_f32 v{vP}, 0x3db8aa3b, v{AA}")
    a(f"v_mov_b32 v{AA+1}, v{vP}")
    wave_reduce("v_max_f32", AA + 1, AA + 2, AA + 3)
    a(f"v_sub_f32 v{vP}, v{vP}, v{AA+1}\nv_exp_f32 v{vP}, v{vP}\ns_nop 0\nv_mov_b32 v{AA+1}, v{vP}")
    wave_reduce("v_add_f32", AA + 1, AA + 2, AA + 3)
    a(f"v_rcp_f32 v{AA+1}, v{AA+1}\ns_nop 0\nv_mul_f32 v{vP}, v{vP}, v{AA+1}")
    for i in range(8): a(f"v_mov_b32 v{WA+i}, 0")
    a(f"v_mov_b32 v{vFa}, v{vFa0}\ns_mov_b32 s60, 0")
    a(f"{lab('wloop')}:")
    for i in range(8): a(f"ds_read_b128 {vr(FR+4*i,4)}, v{vFa} offset:{i*1024}")
    for i in range(16):
        a(f"s_add_u32 s61, s60, {i}\nv_readlane_b32 s{64+i}, v{vP}, s61")
    for i in range(16):
        slot = i % 8
        a(f"s_waitcnt lgkmcnt({7 if i < 9 else 15 - i})")
        for c in range(4):
            a(f"v_lshlrev_b32 v{XX+2*c}, 16, v{FR+4*slot+c}\nv_and_b32 v{XX+2*c+1}, 0xffff0000, v{FR+4*slot+c}")
        if i < 8: a(f"ds_read_b128 {vr(FR+4*slot,4)}, v{vFa} offset:{(i+8)*1024}")
        for c in range(8): a(f"v_fmac_f32 v{WA+c}, s{64+i}, v{XX+c}")
    a(f"v_add_u32 v{vFa}, 16384, v{vFa}\ns_add_u32 s60, s60, 16\ns_cmp_lt_u32 s60, 64\ns_cbranch_scc1 {lab('wloop')}")
    a(f"ds_write_b128 v{vTw}, {vr(WA,4)}\nds_write_b128 v{vTw}, {vr(WA+4,4)} offset:16\ns_waitcnt lgkmcnt(0)")
    for b in range(0, 8, 2):
        a(f"ds_read2_b32 {vr(XX+b,2)}, v{vTr} offset0:{b*8} offset1:{(b+1)*8}")
    a(f"s_lshl_b32 s45, s44, 15\ns_lshl_b32 s46, s22, 11\ns_add_u32 s45, s45, s46\ns_add_u32 s45, s45, {W_OFF}")
    a(f"v_lshlrev_b32 v{vT1}, 5, v2\ns_waitcnt lgkmcnt(0)")
    a(f"buffer_store_dwordx4 {vr(XX,4)}, v{vT1}, s[32:35], s45 offen sc1\nbuffer_store_dwordx4 {vr(XX+4,4)}, v{vT1}, s[32:35], s45 offen offset:16 sc1")
    a(f"s_lshl_b32 s45, s44, 8\ns_add_u32 s45, s45, {C_OFF}\ns_waitcnt vmcnt(0)")
    a(f"s_mov_b64 exec, 1\nbuffer_atomic_add v{vOne1}, v{vZ}, s[32:35], s45 offen offset:4\ns_mov_b64 exec, -1")
    if stamps:
        a(f"s_lshl_b32 s45, s42, 2\ns_add_u32 s45, s45, 4\ns_mov_b32 m0, s45\ns_memrealtime s[98:99]\ns_waitcnt lgkmcnt(0)\nv_writelane_b32 v{vST1}, s98, m0")
    a(f"s_add_u32 s42, s42, 1\ns_cmp_lt_u32 s42, 4\ns_cbranch_scc1 {lab('gloop')}")

    a("s_mov_b32 s42, 0")
    a(f"{lab('oloop')}:")
    a(f"s_lshl_b32 s43, s42, 2\ns_add_u32 s43, s43, {FL_O}")
    ldswait("wo", "s43", 4, 1)
    a(f"s_add_u32 s44, s23, s42\ns_lshl_b32 s43, s42, 12\nv_add_u32 v{vT1}, s43, v{vOr}")
    for w in range(4): a(f"ds_read_b128 {vr(AA+4*w,4)}, v{vT1} offset:{w*1024}")
    a("s_waitcnt lgkmcnt(0)")
    for i in range(4): a(f"v_add_f32 v{AA+i}, v{AA+i}, v{AA+4+i}\nv_add_f32 v{AA+8+i}, v{AA+8+i}, v{AA+12+i}")
    for i in range(4): a(f"v_add_f32 v{AA+i}, v{AA+i}, v{AA+8+i}")
    a(f"s_lshl_b32 s45, s44, 14\ns_add_u32 s45, s45, {O_OFF}\ns_lshl_b32 s46, s22, 10\ns_add_u32 s46, s46, s45")
    a(f"buffer_store_dwordx4 {vr(AA,4)}, v{vL16}, s[32:35], s46 offen sc1")
    a(f"s_lshl_b32 s47, s44, 8\ns_add_u32 s47, s47, {C_OFF}\nv_mov_b32 v{vT2}, 1\ns_waitcnt vmcnt(0)")
    a(f"s_mov_b64 exec, 1\nbuffer_atomic_add v{vT2}, v{vZ}, s[32:35], s47 offen offset:8 sc0\ns_mov_b64 exec, -1\ns_waitcnt vmcnt(0)\nv_readfirstlane_b32 s50, v{vT2}")
    a(f"s_cmp_eq_u32 s50, 15\ns_cbranch_scc0 {lab('notlast')}")
    for jj in range(16):
        if jj % 4 == 0 and jj: a("s_add_u32 s45, s45, 4096")
        a(f"buffer_load_dwordx4 {vr(AA+4*jj,4)}, v{vL16}, s[32:35], s45 offen offset:{(jj%4)*1024} sc1")
    a("s_waitcnt vmcnt(0)")
    for st in (8, 4, 2, 1):
        for k in range(st):
            for i in range(4): a(f"v_add_f32 v{AA+4*k+i}, v{AA+4*k+i}, v{AA+4*(k+st)+i}")
    a(f"v_cvt_pk_bf16_f32 v{AA+4}, v{AA}, v{AA+1}\nv_cvt_pk_bf16_f32 v{AA+5}, v{AA+2}, v{AA+3}")
    a(f"v_lshlrev_b32 v{vT1}, 3, v2\ns_lshl_b32 s45, s44, 9")
    a(f"buffer_store_dwordx2 {vr(AA+4,2)}, v{vT1}, s[36:39], s45 offen")
    a(f"{lab('notlast')}:")
    if stamps:
        a(f"s_add_u32 s45, s42, 20\ns_mov_b32 m0, s45\ns_memrealtime s[98:99]\ns_waitcnt lgkmcnt(0)\nv_writelane_b32 v{vST1}, s98, m0")
    a(f"s_add_u32 s42, s42, 1\ns_cmp_lt_u32 s42, 4\ns_cbranch_scc1 {lab('oloop')}")
    if dbgtime:
        a(f"s_waitcnt vmcnt(0)\ns_memrealtime s[98:99]\ns_waitcnt lgkmcnt(0)\nv_mov_b32 v{vT1}, s98\ns_mov_b64 exec, 1\nglobal_atomic_umax v{vZ}, v{vT1}, s[16:17] offset:4\ns_mov_b64 exec, -1")
    if stamps:
        a("s_waitcnt vmcnt(0)")
        stamp(24, vST1)
        stamp_store(vST1, vT1, 1)
    a(f"s_branch {lab('done')}")

    a(f"{lab('server')}:")
    vZ2 = 4; vTk = 5; vPg = 6; vX = 8; vDd = 12; vDa = 14; vST2 = 15
    a("s_waitcnt lgkmcnt(0)\ns_barrier")
    srd(32, 18, 19, WS_SIZE)
    a(f"v_mov_b32 v{vZ2}, 0\nv_mov_b32 v{vPg}, {FL_PROG}")
    if stamps: a(f"v_mov_b32 v{vST2}, 0")
    a(f"v_mov_b32 v{vDa}, {FL_R}")
    a(f"{lab('wr')}:\nds_read_b32 v{vX}, v{vDa}\ns_waitcnt lgkmcnt(0)\nv_readfirstlane_b32 s50, v{vX}\ns_cmp_ge_u32 s50, 1\ns_cbranch_scc1 {lab('wr_ok')}\n{sleep(16)}\ns_branch {lab('wr')}\n{lab('wr_ok')}:")
    a(f"s_mov_b32 s40, 0\ns_mov_b32 s41, 0\ns_lshl_b32 s42, s21, 8\ns_add_u32 s42, s42, {T_OFF}")
    a(f"{lab('sloop')}:")
    a(f"{lab('thr')}:\nds_read_b128 {vr(vX,4)}, v{vPg}\ns_waitcnt lgkmcnt(0)\nv_min_u32 v{vX}, v{vX}, v{vX+1}\nv_min_u32 v{vX+2}, v{vX+2}, v{vX+3}\nv_min_u32 v{vX}, v{vX}, v{vX+2}\ns_nop 0\nv_readfirstlane_b32 s43, v{vX}")
    a(f"s_sub_u32 s43, s40, s43\ns_cmp_lt_i32 s43, {D}\ns_cbranch_scc1 {lab('go')}\n{sleep(2)}\ns_branch {lab('thr')}\n{lab('go')}:")
    a(f"s_cmp_lt_u32 s40, {NSTATIC}\ns_cbranch_scc0 {lab('dyn')}")
    a("s_lshr_b32 s44, s40, 3\ns_and_b32 s45, s40, 7\ns_lshl_b32 s45, s45, 15\ns_lshl_b32 s46, s22, 18\ns_add_u32 s45, s45, s46")
    a(f"s_branch {lab('have')}")
    a(f"{lab('dyn')}:\nv_mov_b32 v{vTk}, 1\ns_mov_b64 exec, 1\nbuffer_atomic_add v{vTk}, v{vZ2}, s[32:35], s42 offen sc0\ns_mov_b64 exec, -1\ns_waitcnt vmcnt(0)\nv_readfirstlane_b32 s45, v{vTk}")
    a(f"s_cmp_ge_u32 s45, {NDYN}\ns_cbranch_scc1 {lab('send')}")
    a(f"s_lshr_b32 s44, s45, 7\ns_add_u32 s44, s44, {GDYN0}\ns_and_b32 s45, s45, 127\ns_lshl_b32 s45, s45, 15")
    a(f"{lab('have')}:")
    a(f"{lab('wrdy')}:\ns_cmp_gt_u32 s41, s44\ns_cbranch_scc1 {lab('wrdy_ok')}")
    a(f"s_add_u32 s46, s23, s41\ns_lshl_b32 s46, s46, 8\ns_add_u32 s46, s46, {C_OFF}")
    a(f"{lab('pollW')}:\nbuffer_load_dword v{vX}, v{vZ2}, s[32:35], s46 offen offset:4 sc1\ns_waitcnt vmcnt(0)\nv_readfirstlane_b32 s47, v{vX}\ns_cmp_ge_u32 s47, 16\ns_cbranch_scc1 {lab('pollW_ok')}\n{sleep(16)}\ns_branch {lab('pollW')}\n{lab('pollW_ok')}:")
    if stamps:
        a(f"s_mov_b32 m0, s41\ns_memrealtime s[98:99]\ns_waitcnt lgkmcnt(0)\nv_writelane_b32 v{vST2}, s98, m0")
    a(f"s_add_u32 s41, s41, 1\ns_branch {lab('wrdy')}\n{lab('wrdy_ok')}:")
    a("s_add_u32 s46, s23, s44\ns_lshl_b32 s46, s46, 22\ns_add_u32 s45, s45, s46")
    a(f"{lab('pub')}:")
    a(f"s_and_b32 s43, s40, {Q-1}\ns_lshl_b32 s43, s43, 3\ns_add_u32 s43, s43, {FL_DESC}\nv_mov_b32 v{vDa}, s43\ns_add_u32 s40, s40, 1\nv_mov_b32 v{vDd}, s45\nv_mov_b32 v{vDd+1}, s40")
    a(f"s_mov_b64 exec, 1\nds_write_b64 v{vDa}, {vr(vDd,2)}\ns_mov_b64 exec, -1")
    a(f"s_cmp_eq_u32 s45, -1\ns_cbranch_scc0 {lab('sloop')}\ns_waitcnt lgkmcnt(0)")
    if stamps:
        stamp(8, vST2)
        stamp_store(vST2, vX, 2)
    a(f"s_branch {lab('done')}")
    a(f"{lab('send')}:\ns_mov_b32 s45, -1\ns_branch {lab('pub')}")
    a(f"{lab('done')}:\ns_endpgm")

    head = f"""; Linformer low-rank-projection attention, decode step (B=4 H=16 Sq=1 Skv=8192 Dh=256 R=64), gfx950.
; @launch grid=(256,1,1) block=(384,1,1) lds={LDS_BYTES}
.amdgcn_target "amdgcn-amd-amdhsa--gfx950"
.text
.globl {N}
.p2align 8
.type {N},@function
"""
    tail = f"""
.section .rodata,"a"
.p2align 6
.amdhsa_kernel {N}
  .amdhsa_next_free_vgpr 128
  .amdhsa_next_free_sgpr 102
  .amdhsa_accum_offset 128
  .amdhsa_group_segment_fixed_size 0
  .amdhsa_kernarg_size 64
  .amdhsa_user_sgpr_count 2
  .amdhsa_user_sgpr_kernarg_segment_ptr 1
  .amdhsa_system_sgpr_workgroup_id_x 1
.end_amdhsa_kernel
"""
    return head + a.text() + tail

if __name__ == "__main__":
    out = sys.argv[1]
    kw = eval("dict(%s)" % (sys.argv[2] if len(sys.argv) > 2 else ""))
    open(out, "w").write(gen(**kw))
    import build
    print(build.build(out))
```

```python
import sys

KNAME = "standalone__low_rank_proj_linformer__decode_kernel"

P_OFF = 0x000000
O_OFF = 0x400000
C_OFF = 0x600000
M_OFF = 0x620000
ST_OFF = 0x700000
WS_SIZE = 0x800000
SENT = 0xFFFFFFFF

RING = 0
STAGE, SROW = 65536, 1040
SS = STAGE + 64 * SROW
PS = SS + 2048
PK = PS + 4096
OP = PK + 1024
FLAGS = OP + 16384
FL_LAND, FL_CONS, FL_S, FL_O, FL_P, FL_E, FL_F, FL_RST = FLAGS, FLAGS + 16, FLAGS + 32, FLAGS + 48, FLAGS + 64, FLAGS + 80, FLAGS + 84, FLAGS + 88
LDS_BYTES = FLAGS + 256

class A:
    def __init__(self): self.l = []
    def __call__(self, s):
        for x in s.split("\n"):
            x = x.strip()
            if x: self.l.append(("" if x.endswith(":") else "  ") + x)
    def text(self): return "\n".join(self.l)

def vr(b, n=1): return f"v{b}" if n == 1 else f"v[{b}:{b+n-1}]"

def gen(W=20, stamps=False, guard=False, dbgtime=False, kflags="nt", vflags="nt", eflags="", dmadepth=8, msleep=16, hprio=0, csleep=1, noef=False, nocons=False, lin=False, nohelp=False, nochk=False, nopub=False, fakecons=False, fakehelp=False, noread=False, nocomp=False, hmode=0, hsleep=None, htest=None):
    a = A()
    N = KNAME
    lab = lambda s: f"L_{s}"
    def sleep(n):
        g = f"\ns_add_u32 s97, s97, 1\ns_cmp_gt_u32 s97, 0x40000\ns_cbranch_scc1 {lab('done')}" if guard else ""
        return f"s_sleep {n}" + g
    def srd(base, plo, phi, size):
        a(f"s_mov_b32 s{base}, s{plo}\ns_and_b32 s{base+1}, s{phi}, 0xffff\ns_mov_b32 s{base+2}, {size}\ns_mov_b32 s{base+3}, 0x20000")
    def stamp(idx, vst):
        if stamps:
            a(f"s_memrealtime s[98:99]\ns_waitcnt lgkmcnt(0)\nv_writelane_b32 v{vst}, s98, {idx}")
    def stamp_s(sidx, add, vst):
        if stamps:
            a(f"s_add_u32 s96, {sidx}, {add}\ns_mov_b32 m0, s96\ns_memrealtime s[98:99]\ns_waitcnt lgkmcnt(0)\nv_writelane_b32 v{vst}, s98, m0")
    def stamp_store(vst, vtmp, slot):
        if stamps:
            a(f"s_lshl_b32 s98, s2, 3\ns_add_u32 s98, s98, {slot}\ns_lshl_b32 s98, s98, 8\ns_add_u32 s98, s98, {ST_OFF}")
            a(f"v_mbcnt_lo_u32_b32 v{vtmp}, -1, 0\nv_mbcnt_hi_u32_b32 v{vtmp}, -1, v{vtmp}\nv_lshlrev_b32 v{vtmp}, 2, v{vtmp}")
            a(f"buffer_store_dword v{vst}, v{vtmp}, s[32:35], s98 offen\ns_waitcnt vmcnt(0)")
    def ldswait(tag, vaddr, vtmp, target, slp, cmp="s_cmp_ge_i32"):
        a(f"{lab(tag)}:\nds_read_b32 v{vtmp}, v{vaddr}\ns_waitcnt lgkmcnt(0)\nv_readfirstlane_b32 s50, v{vtmp}\n{cmp} s50, {target}\ns_cbranch_scc1 {lab(tag+'_ok')}\n{sleep(slp)}\ns_branch {lab(tag)}\n{lab(tag+'_ok')}:")
    def one_lane(instr):
        a(f"s_mov_b64 exec, 1\n{instr}\ns_mov_b64 exec, -1")
    COL0 = "s_mov_b32 s46, 0x00010001\ns_mov_b32 s47, 0x00010001\ns_mov_b64 exec, s[46:47]"

    a(f"{N}:")
    a(f"s_cmp_ge_u32 s2, 256\ns_cbranch_scc1 {lab('done')}")
    a("s_load_dwordx16 s[4:19], s[0:1], 0")
    if guard: a("s_mov_b32 s97, 0")
    a("v_lshrrev_b32 v1, 6, v0\nv_and_b32 v2, 63, v0")
    a("s_and_b32 s3, s2, 7\ns_lshr_b32 s24, s2, 3")
    a("v_readfirstlane_b32 s20, v1")
    a("s_and_b32 s21, s24, 15\ns_lshr_b32 s24, s24, 4\ns_lshl_b32 s24, s24, 3\ns_add_u32 s22, s24, s3\ns_lshl_b32 s23, s21, 2")
    a(f"s_cmp_lt_u32 s20, 4\ns_cbranch_scc1 {lab('consumer')}")
    a(f"s_cmp_eq_u32 s20, 5\ns_cbranch_scc1 {lab('helper')}")

    vL16 = 3; vLand = 4; vT = 5; vC = 8; vST = 12
    a(f"v_lshlrev_b32 v{vL16}, 4, v2\nv_mov_b32 v{vLand}, {FL_LAND}\nv_mov_b32 v6, {FL_CONS}")
    a("s_lshl_b32 s40, s23, 22\ns_lshl_b32 s41, s22, 18\ns_add_u32 s40, s40, s41")
    if stamps: a(f"v_mov_b32 v{vST}, 0")
    a("s_waitcnt lgkmcnt(0)")
    srd(24, 6, 7, 0x10000000)
    srd(32, 18, 19, WS_SIZE)
    a("s_barrier")
    stamp(0, vST)
    if stamps: a("s_memtime s[62:63]\ns_waitcnt lgkmcnt(0)")
    a(f"s_mov_b32 s41, 0\ns_mov_b32 s60, 0\nds_read_b128 {vr(vC,4)}, v6")
    a(f"{lab('lunit')}:")
    a("s_lshr_b32 s42, s41, 3\ns_and_b32 s42, s42, 3\ns_lshl_b32 s42, s42, 22\ns_and_b32 s43, s41, 7\ns_lshl_b32 s43, s43, 15\ns_add_u32 s42, s42, s43\ns_add_u32 s42, s42, s40")
    if lin: a("s_and_b32 s42, s41, 31\ns_lshl_b32 s42, s42, 15\ns_lshl_b32 s43, s2, 20\ns_add_u32 s42, s42, s43")
    a(f"s_cmp_eq_u32 s41, 32\ns_cbranch_scc0 {lab('lnosw')}\ns_mov_b32 s24, s8\ns_and_b32 s25, s9, 0xffff\n{lab('lnosw')}:")
    a("s_and_b32 s43, s41, 1\ns_lshl_b32 s43, s43, 15\ns_lshl_b32 s44, s41, 5\ns_sub_u32 s45, s41, 1")
    for grp in range(4):
        if nocons and not fakecons or nochk: a(f"s_branch {lab(f'lc{grp}_ok2')}")
        a(f"s_waitcnt lgkmcnt(0)\nv_readfirstlane_b32 s50, v{vC+grp}\ns_cmp_ge_i32 s50, s45\ns_cbranch_scc1 {lab(f'lc{grp}_ok')}")
        a(f"{lab(f'lc{grp}')}:\nds_read_b128 {vr(vC,4)}, v6\ns_waitcnt lgkmcnt(0)\nv_readfirstlane_b32 s50, v{vC+grp}\ns_cmp_ge_i32 s50, s45\ns_cbranch_scc1 {lab(f'lc{grp}_ok')}\ns_add_u32 s60, s60, 1\n{sleep(1)}\ns_branch {lab(f'lc{grp}')}\n{lab(f'lc{grp}_ok')}:")
        a(f"ds_read_b128 {vr(vC,4)}, v6\n{lab(f'lc{grp}_ok2')}:")
        for half in range(2):
            off = grp * 8192 + half * 4096
            a(f"s_add_u32 m0, s43, {off}\ns_add_u32 s48, s42, {off}")
            for pp in range(4):
                p = grp * 8 + half * 4 + pp
                a(f"s_waitcnt vmcnt({W-1})")
                if (p - W + 1) % 8 == 0:
                    a(f"s_add_i32 s51, s44, {p-W+1}\nv_mov_b32 v{vT}, s51")
                    one_lane(f"ds_write_b32 v{vLand}, v{vT}")
                a(f"buffer_load_dwordx4 v{vL16}, s[24:27], s48 offen offset:{pp*1024} {kflags} lds")
    if stamps:
        a(f"s_and_b32 s49, s41, 7\ns_cmp_eq_u32 s49, 7\ns_cbranch_scc0 {lab('lnost')}\ns_lshr_b32 s49, s41, 3")
        stamp_s("s49", 1, vST)
        a(f"{lab('lnost')}:")
    a(f"s_add_u32 s41, s41, 1\ns_cmp_lt_u32 s41, 64\ns_cbranch_scc1 {lab('lunit')}")
    tot = 2048
    for tgt in range(((tot - W + 1) + 7) // 8 * 8, tot + 1, 8):
        a(f"s_waitcnt vmcnt({tot - tgt})\nv_mov_b32 v{vT}, {tgt}")
        one_lane(f"ds_write_b32 v{vLand}, v{vT}")
    a("s_waitcnt lgkmcnt(0)")
    stamp(9, vST)
    if stamps: a(f"s_memtime s[64:65]\ns_waitcnt lgkmcnt(0)\ns_sub_u32 s64, s64, s62\nv_writelane_b32 v{vST}, s64, 29")
    if stamps: a(f"s_getreg_b32 s49, hwreg(HW_REG_XCC_ID)\nv_writelane_b32 v{vST}, s49, 30\nv_writelane_b32 v{vST}, s60, 31")
    stamp_store(vST, vT, 2)
    a(f"s_branch {lab('done')}")

    a(f"{lab('consumer')}:")
    R = 4; Qr = 36; EF = 52; ACC = 116; X = 132; TMP = 140; BB = 148; W4 = 156
    vRdK = 160; vRdV = 161; vSa = 162; vBa = 163; vPsa = 164; vWs = 165; vOa = 166; vLand = 167; vCons = 168; vT = 169; vA = 170
    vOne = 171; vFl = 172; vST = 173; vG16 = 174; vWs0 = 175; vT2 = 3
    Aa = X; DD = ACC
    a(f"v_and_b32 v{vT}, 31, v2\nv_lshlrev_b32 v{vT}, 4, v{vT}\ns_lshl_b32 s41, s23, 9")
    a("s_waitcnt lgkmcnt(0)")
    srd(36, 4, 5, 32768)
    for g in range(4):
        a(f"buffer_load_dwordx4 {vr(Qr+4*g,4)}, v{vT}, s[36:39], s41 offen offset:{g*512}")
    srd(32, 18, 19, WS_SIZE)
    a(f"s_lshl_b32 s40, s20, 13")
    a(f"v_lshlrev_b32 v{vRdK}, 4, v2\nv_add_u32 v{vRdK}, s40, v{vRdK}")
    a(f"v_lshrrev_b32 v{vG16}, 4, v2\nv_lshlrev_b32 v{vRdV}, 11, v{vG16}\nv_and_b32 v{vT}, 15, v2\nv_lshlrev_b32 v{vT}, 4, v{vT}\nv_add_u32 v{vRdV}, v{vRdV}, v{vT}\nv_add_u32 v{vRdV}, s40, v{vRdV}")
    a(f"v_lshlrev_b32 v{vG16}, 4, v{vG16}")
    a(f"s_lshl_b32 s42, s20, 9\ns_add_u32 s42, s42, {SS}")
    a(f"v_and_b32 v{vSa}, 16, v2\nv_lshrrev_b32 v{vSa}, 2, v{vSa}\nv_and_b32 v{vT}, 8, v2\nv_add_u32 v{vSa}, v{vSa}, v{vT}")
    a(f"v_and_b32 v{vT}, 4, v2\nv_lshlrev_b32 v{vT}, 2, v{vT}\nv_add_u32 v{vSa}, v{vSa}, v{vT}")
    a(f"v_lshrrev_b32 v{vT}, 5, v2\nv_lshlrev_b32 v{vT}, 1, v{vT}\nv_add_u32 v{vSa}, v{vSa}, v{vT}\nv_add_u32 v{vSa}, s42, v{vSa}")
    a(f"v_and_b32 v{vT}, 1, v2\nv_lshlrev_b32 v{vBa}, 8, v{vT}\nv_add_u32 v{vBa}, v{vBa}, v{vG16}\nv_add_u32 v{vBa}, s42, v{vBa}")
    a(f"v_add_u32 v{vWs0}, s42, v{vG16}")
    a(f"s_lshl_b32 s43, s20, 8\ns_add_u32 s43, s43, {PS}\nv_add_u32 v{vPsa}, s43, v{vG16}")
    a(f"v_lshrrev_b32 v{vOa}, 5, v2\nv_lshlrev_b32 v{vOa}, 9, v{vOa}\nv_and_b32 v{vT}, 15, v2\nv_lshlrev_b32 v{vT}, 5, v{vT}\nv_add_u32 v{vOa}, v{vOa}, v{vT}")
    a(f"v_and_b32 v{vT}, 16, v2\nv_lshrrev_b32 v{vT}, 2, v{vT}\nv_add_u32 v{vOa}, v{vOa}, v{vT}\ns_lshl_b32 s43, s20, 10\ns_add_u32 s43, s43, {OP}\nv_add_u32 v{vOa}, s43, v{vOa}")
    a(f"v_mov_b32 v{vLand}, {FL_LAND}\ns_lshl_b32 s43, s20, 2\ns_add_u32 s43, s43, {FL_CONS}\nv_mov_b32 v{vCons}, s43\nv_mov_b32 v{vOne}, 1")
    a("s_mov_b32 s55, 0xffff0000")
    if stamps: a(f"v_mov_b32 v{vST}, 0")
    a("s_barrier")
    if nocons: a(f"s_branch {lab('done')}")
    stamp(0, vST)
    a("s_waitcnt vmcnt(0)")
    a("s_mov_b32 s41, 0\ns_lshl_b32 s44, s20, 3\ns_add_u32 s44, s44, 8")

    def unit_head(tag, vbase):
        ldswait(tag, vLand, vT, "s44", csleep)
        a(f"s_and_b32 s45, s41, 1\ns_lshl_b32 s45, s45, 15\nv_add_u32 v{vA}, s45, v{vbase}")
    def signal_consumed():
        a(f"s_add_u32 s45, s41, 1\nv_mov_b32 v{vT}, s45")
        one_lane(f"ds_write_b32 v{vCons}, v{vT}")

    a(f"{lab('kunit')}:")
    unit_head("kw", vRdK)
    for t in range(8 if not noread else 0): a(f"ds_read_b128 {vr(R+4*t,4)}, v{vA} offset:{t*1024}")
    for t in range(8):
        a(f"s_waitcnt lgkmcnt({7-t})")
        if t == 7: signal_consumed()
        if noread or nocomp: continue
        r = R + 4 * t
        a(f"v_dot2_f32_bf16 v{Aa+t}, v{r}, v{Qr}, 0")
        for i in range(1, 4): a(f"v_dot2_f32_bf16 v{Aa+t}, v{r+i}, v{Qr+i}, v{Aa+t}")
    a("s_nop 0")
    for p in range(4): a(f"v_permlane16_swap_b32 v{Aa+2*p}, v{Aa+2*p+1}")
    for p in range(4): a(f"v_add_f32 v{TMP+p}, v{Aa+2*p}, v{Aa+2*p+1}")
    c0, c1, d = TMP + 4, TMP + 5, TMP + 6
    a(f"v_add_f32_dpp v{c0}, v{TMP}, v{TMP} row_ror:8 row_mask:0xf bank_mask:0x3")
    a(f"v_add_f32_dpp v{c0}, v{TMP+1}, v{TMP+1} row_ror:8 row_mask:0xf bank_mask:0xc")
    a(f"v_add_f32_dpp v{c1}, v{TMP+2}, v{TMP+2} row_ror:8 row_mask:0xf bank_mask:0x3")
    a(f"v_add_f32_dpp v{c1}, v{TMP+3}, v{TMP+3} row_ror:8 row_mask:0xf bank_mask:0xc")
    a("s_nop 0")
    a(f"v_add_f32_dpp v{d}, v{c0}, v{c0} row_half_mirror row_mask:0xf bank_mask:0x5")
    a(f"v_add_f32_dpp v{d}, v{c1}, v{c1} row_half_mirror row_mask:0xf bank_mask:0xa")
    a("s_nop 1")
    a(f"v_add_f32_dpp v{d}, v{d}, v{d} quad_perm:[1,0,3,2] row_mask:0xf bank_mask:0xf")
    a("s_nop 1")
    a(f"v_add_f32_dpp v{d}, v{d}, v{d} quad_perm:[2,3,0,1] row_mask:0xf bank_mask:0xf")
    a(f"v_cvt_pk_bf16_f32 v{c0}, v{d}, v{d}")
    a(f"s_and_b32 s45, s41, 7\ns_lshl_b32 s46, s45, 5\nv_add_u32 v{vT}, s46, v{vSa}")
    a(f"v_lshlrev_b32 v{c1}, 16, v{c0}")
    a(f"ds_write_b16 v{vT}, v{c0}")
    a(f"v_sub_f32 v{c1}, v{d}, v{c1}")
    a(f"v_cvt_pk_bf16_f32 v{TMP}, v{c1}, v{c1}")
    a(f"ds_write_b16 v{vT}, v{TMP} offset:256")
    a(f"s_cmp_eq_u32 s45, 7\ns_cbranch_scc0 {lab('knoend')}")
    a(f"s_cmp_eq_u32 s41, 7\ns_cbranch_scc0 {lab('noE')}")
    a(f"v_mov_b32 v{vFl}, {FL_E}")
    ldswait("wE", vFl, vT, "1", 2)
    a(f"v_and_b32 v{vT}, 15, v2\nv_mul_u32_u24 v{vA}, {SROW}, v{vT}\nv_lshrrev_b32 v{vT}, 5, v2\nv_lshlrev_b32 v{vT}, 7, v{vT}\nv_add_u32 v{vA}, v{vA}, v{vT}")
    a(f"v_and_b32 v{vT}, 16, v2\nv_add_u32 v{vA}, v{vA}, v{vT}\ns_lshl_b32 s45, s20, 5\ns_add_u32 s45, s45, {STAGE}\nv_add_u32 v{vA}, s45, v{vA}")
    for tl in range(4):
        for ks in range(4):
            a(f"ds_read_b128 {vr(EF+16*tl+4*ks,4)}, v{vA} offset:{tl*16*SROW+ks*256}")
        a("s_waitcnt lgkmcnt(4)")
    a(f"{lab('noE')}:")
    a("s_waitcnt lgkmcnt(0)")
    for ks in range(4): a(f"ds_read_b128 {vr(R+4*ks,4)}, v{vBa} offset:{ks*64}")
    for ks in range(4):
        a(f"s_waitcnt lgkmcnt({3-ks})")
        for tl in range(4):
            c = "0" if ks == 0 else vr(DD+4*tl, 4)
            a(f"v_mfma_f32_16x16x32_bf16 {vr(DD+4*tl,4)}, {vr(EF+16*tl+4*ks,4)}, {vr(R+4*ks,4)}, {c}")
    a(f"s_lshr_b32 s45, s41, 3\ns_lshl_b32 s48, s45, 10\nv_add_u32 v{vA}, s48, v{vPsa}\ns_lshl_b32 s48, s45, 2\ns_add_u32 s48, s48, {FL_S}\nv_mov_b32 v{vFl}, s48")
    a("s_nop 4")
    for i in range(16):
        a(f"v_add_f32_dpp v{DD+i}, v{DD+i}, v{DD+i} quad_perm:[1,0,3,2] row_mask:0xf bank_mask:0xf")
    a(COL0)
    for tl in range(4): a(f"ds_write_b128 v{vA}, {vr(DD+4*tl,4)} offset:{tl*64}")
    a("s_mov_b64 exec, -1\ns_waitcnt lgkmcnt(0)")
    one_lane(f"ds_add_u32 v{vFl}, v{vOne}")
    for i in range(12): a(f"v_mov_b32 v{Qr+i}, v{Qr+4+i}")
    stamp_s("s45", 1, vST)
    a(f"{lab('knoend')}:")
    a(f"s_add_u32 s41, s41, 1\ns_add_u32 s44, s44, 32\ns_cmp_lt_u32 s41, 32\ns_cbranch_scc1 {lab('kunit')}")

    a(f"v_mov_b32 v{vFl}, {FL_F}")
    ldswait("wF", vFl, vT, "1", 2)
    a(f"v_and_b32 v{vT}, 15, v2\nv_lshrrev_b32 v{vT}, 2, v{vT}\nv_lshrrev_b32 v{vA}, 4, v2\nv_lshl_add_u32 v{vA}, v{vA}, 3, v{vT}\nv_mul_u32_u24 v{vA}, {SROW}, v{vA}")
    a(f"v_and_b32 v{vT}, 3, v2\nv_lshlrev_b32 v{vT}, 3, v{vT}\nv_add_u32 v{vA}, v{vA}, v{vT}\ns_lshl_b32 s45, s20, 5\ns_add_u32 s45, s45, {STAGE}\nv_add_u32 v{vA}, s45, v{vA}")
    n = 0
    for uu in range(8):
        for ks in range(2):
            for hf in range(2):
                a(f"ds_read_b64_tr_b16 {vr(EF+(uu*2+ks)*4+2*hf,2)}, v{vA} offset:{(32*ks+4*hf)*SROW+uu*128}")
                n += 1
                if n % 8 == 0: a("s_waitcnt lgkmcnt(4)")
    a("s_waitcnt lgkmcnt(0)")
    for i in range(16): a(f"v_mov_b32 v{ACC+i}, 0")
    stamp(5, vST)

    a(f"{lab('vhead')}:")
    a(f"s_lshr_b32 s45, s41, 3\ns_and_b32 s45, s45, 3\ns_lshl_b32 s48, s45, 2\ns_add_u32 s48, s48, {FL_P}\nv_mov_b32 v{vFl}, s48")
    ldswait("wP", vFl, vT, "1", 2)
    a(f"s_lshl_b32 s48, s45, 8\ns_add_u32 s48, s48, {PK}\nv_and_b32 v{vT}, 1, v2\nv_lshlrev_b32 v{vT}, 7, v{vT}\nv_add_u32 v{vT}, v{vT}, v{vG16}\nv_add_u32 v{vT}, s48, v{vT}")
    a(f"ds_read_b128 {vr(BB,4)}, v{vT}\nds_read_b128 {vr(BB+4,4)}, v{vT} offset:64\ns_waitcnt lgkmcnt(0)")
    for uu in range(8):
        a(f"v_mfma_f32_16x16x32_bf16 {vr(R+4*uu,4)}, {vr(EF+uu*8,4)}, {vr(BB,4)}, 0")
    for uu in range(8):
        a(f"v_mfma_f32_16x16x32_bf16 {vr(R+4*uu,4)}, {vr(EF+uu*8+4,4)}, {vr(BB+4,4)}, {vr(R+4*uu,4)}")
    a("s_nop 7")
    for i in range(32):
        a(f"v_add_f32_dpp v{R+i}, v{R+i}, v{R+i} quad_perm:[1,0,3,2] row_mask:0xf bank_mask:0xf")
    a(COL0)
    for uu in range(8): a(f"ds_write_b128 v{vWs0}, {vr(R+4*uu,4)} offset:{uu*64}")
    a(f"s_mov_b64 exec, -1\nv_mov_b32 v{vWs}, v{vWs0}\ns_waitcnt lgkmcnt(0)")
    a(f"{lab('vunit')}:")
    unit_head("vw", vRdV)
    a(f"ds_read_b128 {vr(W4,4)}, v{vWs}")
    for i in range(4 if not noread else 0):
        for hf in range(2):
            a(f"ds_read_b128 {vr(R+4*(2*i+hf),4)}, v{vA} offset:{i*512+hf*256}")
    for k in range(8):
        i, hf = k >> 1, k & 1
        a(f"s_waitcnt lgkmcnt({7-k})")
        if k == 7: signal_consumed()
        if noread or nocomp: continue
        r = R + 4 * k
        for e in range(4):
            a(f"v_lshlrev_b32 v{X+2*e}, 16, v{r+e}\nv_and_b32 v{X+2*e+1}, s55, v{r+e}")
        wp = W4 + (i & ~1)
        sel = "op_sel_hi:[1,0,1]" if i % 2 == 0 else "op_sel:[0,1,0] op_sel_hi:[1,1,1]"
        for e in range(4):
            ac = ACC + 8 * hf + 2 * e
            a(f"v_pk_fma_f32 {vr(ac,2)}, {vr(X+2*e,2)}, {vr(wp,2)}, {vr(ac,2)} {sel}")
    a(f"v_add_u32 v{vWs}, 64, v{vWs}")
    a(f"s_and_b32 s45, s41, 7\ns_add_u32 s41, s41, 1\ns_add_u32 s44, s44, 32\ns_cmp_eq_u32 s45, 7\ns_cbranch_scc0 {lab('vunit')}")
    a("s_sub_u32 s45, s41, 33\ns_lshr_b32 s45, s45, 3")
    for e in range(8): a(f"v_permlane32_swap_b32 v{ACC+e}, v{ACC+8+e}")
    for e in range(8): a(f"v_add_f32 v{X+e}, v{ACC+e}, v{ACC+8+e}")
    a(f"s_lshl_b32 s48, s45, 12\nv_add_u32 v{vA}, s48, v{vOa}\ns_lshl_b32 s48, s45, 2\ns_add_u32 s48, s48, {FL_O}\nv_mov_b32 v{vFl}, s48")
    for q in range(4): a(f"v_permlane16_swap_b32 v{X+2*q}, v{X+2*q+1}")
    for q in range(4): a(f"v_add_f32 v{TMP+q}, v{X+2*q}, v{X+2*q+1}")
    for q in range(4): a(f"ds_write_b32 v{vA}, v{TMP+q} offset:{8*q}")
    for i in range(16): a(f"v_mov_b32 v{ACC+i}, 0")
    a("s_waitcnt lgkmcnt(0)")
    one_lane(f"ds_add_u32 v{vFl}, v{vOne}")
    stamp_s("s45", 6, vST)
    a(f"s_cmp_lt_u32 s41, 64\ns_cbranch_scc1 {lab('vhead')}")
    if stamps:
        a(f"s_cmp_eq_u32 s20, 0\ns_cbranch_scc0 {lab('done')}")
        stamp_store(vST, vT, 0)
    a(f"s_branch {lab('done')}")

    a(f"{lab('helper')}:")
    if hprio: a(f"s_setprio {hprio}")
    vL16 = 3; vZ = 4; vOne = 5; vL4 = 10; vP = 13; vT1 = 14; vT2 = 15; vFl = 18; vST = 19; vOr = 20; vPsr = 21; vMo = 22
    AA = 48
    a(f"v_lshlrev_b32 v{vL4}, 2, v2\nv_mov_b32 v{vZ}, 0\nv_add_u32 v{vT1}, {FLAGS}, v{vL4}\nds_write_b32 v{vT1}, v{vZ}")
    a(f"v_lshlrev_b32 v{vL16}, 4, v2\nv_mov_b32 v{vOne}, 1")
    if dbgtime: a("s_memrealtime s[98:99]")
    a("s_waitcnt lgkmcnt(0)\ns_barrier")
    if fakehelp:
        a(f"v_mov_b32 v{vT1}, {FL_P}\nv_mov_b32 v24, 1\nv_mov_b32 v25, 1\nv_mov_b32 v26, 1\nv_mov_b32 v27, 1\nds_write_b128 v{vT1}, v[24:27]\nds_write_b128 v{vT1}, v[24:27] offset:16\ns_waitcnt lgkmcnt(0)\ns_branch {lab('done')}")
    if fakecons: a(f"v_mov_b32 v{vT1}, {FL_CONS}\nv_mov_b32 v24, 1000\nv_mov_b32 v25, 1000\nv_mov_b32 v26, 1000\nv_mov_b32 v27, 1000\nds_write_b128 v{vT1}, v[24:27]\ns_waitcnt lgkmcnt(0)")
    if htest:
        srd(32, 18, 19, WS_SIZE)
        a(f"v_mov_b32 v{vFl}, {FL_LAND}\ns_mov_b32 s42, 200\ns_lshl_b32 s46, s2, 10\ns_add_u32 s46, s46, {O_OFF}\ns_lshr_b32 s47, s2, 2\ns_lshl_b32 s47, s47, 8\ns_add_u32 s47, s47, {C_OFF}")
        a(f"s_lshr_b32 s45, s2, 4\ns_lshl_b32 s45, s45, 14\ns_add_u32 s45, s45, {O_OFF}")
        a(f"{lab('ht')}:")
        ldswait("htw", vFl, vT1, "s42", 16)
        for op in htest.split("+"):
            if op == "st1k": a(f"buffer_store_dwordx4 {vr(AA,4)}, v{vL16}, s[32:35], s46 offen sc1\ns_waitcnt vmcnt(0)")
            if op == "st1kp": a(f"buffer_store_dwordx4 {vr(AA,4)}, v{vL16}, s[32:35], s46 offen\ns_waitcnt vmcnt(0)")
            if op == "st1knt": a(f"buffer_store_dwordx4 {vr(AA,4)}, v{vL16}, s[32:35], s46 offen sc1 nt\ns_waitcnt vmcnt(0)")
            if op == "st256": a(f"buffer_store_dword v{AA}, v{vL4}, s[32:35], s46 offen sc1\ns_waitcnt vmcnt(0)")
            if op == "at":
                one_lane(f"buffer_atomic_add v{vOne}, v{vZ}, s[32:35], s47 offen offset:8 sc0")
                a(f"s_waitcnt vmcnt(0)\nv_mov_b32 v{vOne}, 1")
            if op == "ld16":
                for jj in range(16):
                    a(f"buffer_load_dwordx4 {vr(AA+4*jj,4)}, v{vL16}, s[32:35], s45 offen offset:{(jj%4)*1024} sc1")
                a("s_waitcnt vmcnt(0)")
            if op == "ld1": a(f"buffer_load_dword v{AA+8}, v{vL4}, s[32:35], s46 offen sc1\ns_waitcnt vmcnt(0)")
            if op == "st16x256":
                for m in range(16): a(f"buffer_store_dword v{AA}, v{vL4}, s[32:35], s45 offen offset:{m*256} sc1")
        a(f"s_add_u32 s42, s42, 256\ns_cmp_lt_u32 s42, 2048\ns_cbranch_scc1 {lab('ht')}\ns_branch {lab('done')}")
    if nocons or nohelp: a(f"s_branch {lab('done')}")
    if dbgtime:
        a(f"s_not_b32 s98, s98\nv_mov_b32 v{vT1}, s98")
        one_lane(f"global_atomic_umax v{vZ}, v{vT1}, s[16:17] offset:8")
    srd(24, 10, 11, 0x100000)
    srd(28, 12, 13, 0x100000)
    srd(32, 18, 19, WS_SIZE)
    srd(36, 14, 15, 32768)
    if stamps: a(f"v_mov_b32 v{vST}, 0")
    stamp(0, vST)
    def dma(tag, srdname):
        if noef or hmode == 2:
            a("s_waitcnt vmcnt(0)")
            return
        a(f"s_mov_b32 s40, {STAGE}\ns_lshl_b32 s41, s22, 10\ns_mov_b32 s43, 64\n{lab(tag)}:")
        a(f"s_mov_b32 m0, s40\ns_add_u32 s40, s40, {SROW}\nbuffer_load_dwordx4 v{vL16}, {srdname}, s41 offen {eflags} lds")
        a(f"s_add_u32 s41, s41, 16384\ns_waitcnt vmcnt({dmadepth-1})\ns_sub_u32 s43, s43, 1\ns_cmp_lg_u32 s43, 0\ns_cbranch_scc1 {lab(tag)}")
        a("s_waitcnt vmcnt(0)")
    a(f"s_lshl_b32 s58, s21, 8\ns_add_u32 s58, s58, {C_OFF}")
    a(f"s_lshl_b32 s59, s23, 8\ns_add_u32 s59, s59, {M_OFF}")
    a(f"s_cmp_lg_u32 s22, 0\ns_cbranch_scc1 {lab('noreset')}")
    for i in range(4): a(f"v_mov_b32 v{AA+i}, 0\nv_mov_b32 v{AA+4+i}, -1")
    one_lane(f"buffer_store_dwordx4 {vr(AA,4)}, v{vZ}, s[32:35], s58 offen sc1")
    a(f"buffer_store_dwordx4 {vr(AA+4,4)}, v{vL16}, s[32:35], s59 offen sc1")
    a(f"s_lshl_b32 s46, s21, 4\nv_mov_b32 v{vT1}, s46\ns_waitcnt vmcnt(0)")
    one_lane(f"global_store_dword v{vT1}, v{vOne}, s[16:17] sc1")
    a(f"{lab('noreset')}:")
    dma("edma", "s[24:27]")
    a(f"v_mov_b32 v{vFl}, {FL_E}\nds_write_b32 v{vFl}, v{vOne}")
    stamp(1, vST)
    vSr = 21; vL8 = 23
    a(f"v_add_u32 v{vOr}, {OP}, v{vL16}\nv_lshlrev_b32 v{vL8}, 3, v2")
    a(f"v_lshrrev_b32 v{vSr}, 4, v2\nv_and_b32 v{vSr}, 1, v{vSr}\nv_lshlrev_b32 v{vSr}, 10, v{vSr}\nv_and_b32 v{vT1}, 15, v2\nv_lshlrev_b32 v{vT1}, 4, v{vT1}\nv_add_u32 v{vSr}, v{vSr}, v{vT1}\nv_add_u32 v{vSr}, {PS}, v{vSr}")
    a(f"v_and_b32 v{vMo}, 1, v2\nv_lshlrev_b32 v{vMo}, 7, v{vMo}\nv_lshrrev_b32 v{vT1}, 1, v2\nv_lshlrev_b32 v{vT1}, 2, v{vT1}\nv_add_u32 v{vMo}, v{vMo}, v{vT1}")

    def wave_reduce(op, v, t1, t2):
        for ror in (8, 4, 2, 1):
            a(f"s_nop 1\n{op}_dpp v{v}, v{v}, v{v} row_ror:{ror} row_mask:0xf bank_mask:0xf")
        a(f"v_mov_b32 v{t1}, v{v}\nv_mov_b32 v{t2}, v{v}\ns_nop 1\nv_permlane16_swap_b32 v{t1}, v{t2}\n{op} v{v}, v{t1}, v{t2}")
        a(f"s_nop 0\nv_mov_b32 v{t1}, v{v}\nv_mov_b32 v{t2}, v{v}\ns_nop 1\nv_permlane32_swap_b32 v{t1}, v{t2}\n{op} v{v}, v{t1}, v{t2}")
    def wait_s(g):
        a(f"v_mov_b32 v{vFl}, {FL_S+4*g}")
        ldswait(f"s{g}w", vFl, vT1, "4", hsleep or 4)
    def s_publish(rd):
        t = f"r{rd}"
        if hmode in (1, 2, 4): return
        for w in range(4): a(f"ds_read_b128 {vr(AA+4*w,4)}, v{vSr} offset:{rd*2048+w*256}")
        a(f"s_lshl_b32 s45, s21, 1\ns_add_u32 s45, s45, {rd}\ns_lshl_b32 s45, s45, 13\ns_add_u32 s45, s45, {P_OFF}\ns_lshl_b32 s46, s22, 9\ns_add_u32 s46, s46, s45")
        a("s_waitcnt lgkmcnt(0)")
        for i in range(4): a(f"v_add_f32 v{AA+i}, v{AA+i}, v{AA+4+i}\nv_add_f32 v{AA+8+i}, v{AA+8+i}, v{AA+12+i}")
        for i in range(4): a(f"v_add_f32 v{AA+i}, v{AA+i}, v{AA+8+i}")
        a(f"s_mov_b32 exec_hi, 0\nbuffer_store_dwordx4 {vr(AA,4)}, v{vL16}, s[32:35], s46 offen sc1\ns_mov_b64 exec, -1")
        a(f"v_mov_b32 v{vT2}, 1")
        a("s_waitcnt vmcnt(0)")
        one_lane(f"buffer_atomic_add v{vT2}, v{vZ}, s[32:35], s58 offen offset:{4*rd} sc0")
        stamp(2 + 4 * rd, vST)
        a(f"s_waitcnt vmcnt(0)\nv_readfirstlane_b32 s50, v{vT2}")
        a(f"s_cmp_eq_u32 s50, 15\ns_cbranch_scc0 {lab(t+'_nl')}")
        for jj in range(16):
            if jj % 8 == 0 and jj: a("s_add_u32 s45, s45, 4096")
            for h in range(2):
                a(f"buffer_load_dword v{AA+16*h+jj}, v{vL4}, s[32:35], s45 offen offset:{(jj%8)*512+h*256} sc1")
        a("s_waitcnt vmcnt(0)")
        for h in range(2):
            B0 = AA + 16 * h
            T = AA + 40
            for st in (8, 4, 2, 1):
                for i in range(st): a(f"v_add_f32 v{B0+i}, v{B0+i}, v{B0+i+st}")
            a(f"v_mul_f32 v{vP}, 0x3db8aa3b, v{B0}")
            a(f"v_mov_b32 v{T+1}, v{vP}")
            wave_reduce("v_max_f32", T + 1, T + 2, T + 3)
            a(f"v_sub_f32 v{vP}, v{vP}, v{T+1}\nv_exp_f32 v{vP}, v{vP}\ns_nop 0\nv_mov_b32 v{T+1}, v{vP}")
            wave_reduce("v_add_f32", T + 1, T + 2, T + 3)
            a(f"v_rcp_f32 v{T+1}, v{T+1}\ns_nop 0\nv_mul_f32 v{vP}, v{vP}, v{T+1}")
            a(f"v_cvt_pk_bf16_f32 v{T}, v{vP}, v{vP}\nv_lshlrev_b32 v{T}, 16, v{T}\nv_sub_f32 v{T+1}, v{vP}, v{T}\ns_nop 1")
            a(f"v_mov_b32_dpp v{T+2}, v{vP} quad_perm:[1,0,3,2] row_mask:0xf bank_mask:0xf")
            a(f"v_mov_b32_dpp v{T+3}, v{T+1} quad_perm:[1,0,3,2] row_mask:0xf bank_mask:0xf")
            a(f"v_cvt_pk_bf16_f32 v{T+4}, v{vP}, v{T+2}\nv_cvt_pk_bf16_f32 v{T+5}, v{T+3}, v{T+1}")
            a(f"v_and_b32 v{T+6}, 1, v2\nv_cmp_eq_u32 vcc, 1, v{T+6}\ns_nop 1\nv_cndmask_b32 v{T+4}, v{T+4}, v{T+5}, vcc")
            a(f"v_mov_b32 v{T+5}, 0x7fc07fc0\nv_cmp_eq_u32 vcc, -1, v{T+4}\ns_nop 1\nv_cndmask_b32 v{T+8+h}, v{T+4}, v{T+5}, vcc")
        for h in range(2):
            a(f"buffer_store_dword v{AA+48+h}, v{vMo}, s[32:35], s59 offen offset:{(2*rd+h)*256} sc1")
        a(f"{lab(t+'_nl')}:")
        stamp(3 + 4 * rd, vST)
    def p_fetch(rd):
        t = f"p{rd}"
        if hmode in (1, 2, 4):
            a(f"v_mov_b32 v{vFl}, {FL_P+8*rd}\nds_write_b32 v{vFl}, v{vOne}\nds_write_b32 v{vFl}, v{vOne} offset:4")
            return
        a(f"{lab(t)}:\nbuffer_load_dwordx2 {vr(AA,2)}, v{vL8}, s[32:35], s59 offen offset:{rd*512} sc1\ns_waitcnt vmcnt(0)\nv_cmp_eq_u32 vcc, -1, v{AA}\nv_cmp_eq_u32 s[46:47], -1, v{AA+1}\ns_nop 1\ns_or_b64 vcc, vcc, s[46:47]\ns_cmp_eq_u64 vcc, 0\ns_cbranch_scc1 {lab(t+'_ok')}\n{sleep(msleep)}\ns_branch {lab(t)}\n{lab(t+'_ok')}:")
        a(f"v_add_u32 v{vT1}, {PK+rd*512}, v{vL8}\nds_write_b64 v{vT1}, {vr(AA,2)}\nv_mov_b32 v{vFl}, {FL_P+8*rd}\ns_waitcnt lgkmcnt(0)\nds_write_b32 v{vFl}, v{vOne}\nds_write_b32 v{vFl}, v{vOne} offset:4")
        stamp(4 + 4 * rd, vST)

    wait_s(0)
    dma("fdma", "s[28:31]")
    a(f"v_mov_b32 v{vFl}, {FL_F}\nds_write_b32 v{vFl}, v{vOne}")
    stamp(18, vST)
    if hmode not in (1, 2, 4):
        a(f"s_lshl_b32 s46, s21, 4\nv_mov_b32 v{vT1}, s46")
        a(f"{lab('wgo')}:\nglobal_load_dword v{vT2}, v{vT1}, s[16:17] sc1\ns_waitcnt vmcnt(0)\nv_readfirstlane_b32 s50, v{vT2}\ns_cmp_ge_u32 s50, 1\ns_cbranch_scc1 {lab('wgo_ok')}\n{sleep(32)}\ns_branch {lab('wgo')}\n{lab('wgo_ok')}:")
    wait_s(1); s_publish(0); p_fetch(0)
    wait_s(2); wait_s(3); s_publish(1); p_fetch(1)

    OA = 64
    for g in range(4):
        a(f"v_mov_b32 v{vFl}, {FL_O+4*g}")
        ldswait(f"wo{g}", vFl, vT1, "4", (hsleep or 4) if g < 3 else 1)
        for w in range(4): a(f"ds_read_b128 {vr(AA+4*w-16,4)}, v{vOr} offset:{g*4096+w*1024}")
        a("s_waitcnt lgkmcnt(0)")
        B0 = AA - 16
        for i in range(4): a(f"v_add_f32 v{B0+i}, v{B0+i}, v{B0+4+i}\nv_add_f32 v{B0+8+i}, v{B0+8+i}, v{B0+12+i}")
        for i in range(4): a(f"v_add_f32 v{OA+4*g+i}, v{B0+i}, v{B0+8+i}")
        stamp(20 + g, vST)
    if hmode not in (1, 2, 3):
        a(f"s_lshl_b32 s45, s23, 14\ns_add_u32 s45, s45, {O_OFF}\ns_lshl_b32 s46, s22, 10\ns_add_u32 s46, s46, s45")
        for g in range(4):
            a(f"buffer_store_dwordx4 {vr(OA+4*g,4)}, v{vL16}, s[32:35], s46 offen sc1")
            if g < 3: a("s_add_u32 s46, s46, 16384")
        a(f"v_mov_b32 v{vT2}, 1\ns_waitcnt vmcnt(0)")
        one_lane(f"buffer_atomic_add v{vT2}, v{vZ}, s[32:35], s58 offen offset:8 sc0")
        a(f"s_waitcnt vmcnt(0)\nv_readfirstlane_b32 s50, v{vT2}")
        a(f"s_cmp_eq_u32 s50, 15\ns_cbranch_scc0 {lab('notlast')}")
        GA = (32, 96)
        def gather(g):
            b = GA[g & 1]
            for jj in range(16):
                a(f"buffer_load_dwordx4 {vr(b+4*jj,4)}, v{vL16}, s[32:35], s45 offen offset:{(jj%4)*1024} sc1")
                if jj % 4 == 3: a("s_add_u32 s45, s45, 4096")
        def finish(g):
            b = GA[g & 1]
            for st in (8, 4, 2, 1):
                for k in range(st):
                    for i in range(4): a(f"v_add_f32 v{b+4*k+i}, v{b+4*k+i}, v{b+4*(k+st)+i}")
            a(f"v_cvt_pk_bf16_f32 v{24+2*g}, v{b}, v{b+1}\nv_cvt_pk_bf16_f32 v{25+2*g}, v{b+2}, v{b+3}")
        gather(0); gather(1)
        a("s_waitcnt vmcnt(16)"); finish(0); gather(2)
        a("s_waitcnt vmcnt(16)"); finish(1); gather(3)
        a("s_waitcnt vmcnt(16)"); finish(2)
        a("s_waitcnt vmcnt(0)"); finish(3)
        a(f"s_lshl_b32 s45, s23, 9")
        for g in range(4):
            a(f"buffer_store_dwordx2 {vr(24+2*g,2)}, v{vL8}, s[36:39], s45 offen offset:{g*512}")
    a(f"{lab('notlast')}:")
    if dbgtime:
        a(f"s_waitcnt vmcnt(0)\ns_memrealtime s[98:99]\ns_waitcnt lgkmcnt(0)\nv_mov_b32 v{vT1}, s98")
        one_lane(f"global_atomic_umax v{vZ}, v{vT1}, s[16:17] offset:4")
    if stamps:
        a("s_waitcnt vmcnt(0)")
        stamp(24, vST)
        stamp_store(vST, vT1, 1)
    a(f"{lab('done')}:\ns_endpgm")

    head = f"""; Linformer low-rank-projection attention, decode step (B=4 H=16 Sq=1 Skv=8192 Dh=256 R=64), gfx950.
; @launch grid=(256,1,1) block=(384,1,1) lds={LDS_BYTES}
.amdgcn_target "amdgcn-amd-amdhsa--gfx950"
.text
.globl {N}
.p2align 8
.type {N},@function
"""
    tail = f"""
.section .rodata,"a"
.p2align 6
.amdhsa_kernel {N}
  .amdhsa_next_free_vgpr 176
  .amdhsa_next_free_sgpr 102
  .amdhsa_accum_offset 176
  .amdhsa_group_segment_fixed_size 0
  .amdhsa_kernarg_size 64
  .amdhsa_user_sgpr_count 2
  .amdhsa_user_sgpr_kernarg_segment_ptr 1
  .amdhsa_system_sgpr_workgroup_id_x 1
.end_amdhsa_kernel
"""
    return head + a.text() + tail

if __name__ == "__main__":
    out = sys.argv[1]
    kw = eval("dict(%s)" % (sys.argv[2] if len(sys.argv) > 2 else ""))
    open(out, "w").write(gen(**kw))
    import build
    print(build.build(out), "lds", LDS_BYTES)
```

```python
import sys

KNAME = "standalone__low_rank_proj_linformer__decode_kernel"

P_OFF = 0x000000
O_OFF = 0x400000
C_OFF = 0x600000
M_OFF = 0x620000
ST_OFF = 0x700000
WS_SIZE = 0x800000
SENT = 0xFFFFFFFF

RING = 0
STAGE, SROW = 65536, 1040
SS = STAGE + 64 * SROW
PS = SS + 2048
PK = PS + 4096
OP = PK + 1024
FLAGS = OP + 16384
FL_LAND, FL_CONS, FL_S, FL_O, FL_P, FL_E, FL_F, FL_RST = FLAGS, FLAGS + 16, FLAGS + 32, FLAGS + 48, FLAGS + 64, FLAGS + 80, FLAGS + 84, FLAGS + 88
LDS_BYTES = FLAGS + 256

class A:
    def __init__(self): self.l = []
    def __call__(self, s):
        for x in s.split("\n"):
            x = x.strip()
            if x: self.l.append(("" if x.endswith(":") else "  ") + x)
    def text(self): return "\n".join(self.l)

def vr(b, n=1): return f"v{b}" if n == 1 else f"v[{b}:{b+n-1}]"

def gen(W=20, stamps=False, guard=False, dbgtime=False, kflags="nt", vflags="nt", eflags="", dmadepth=8, msleep=16, hprio=0, csleep=1, noef=False, nocons=False, lin=False, nohelp=False, nochk=False, nopub=False, fakecons=False, fakehelp=False, noread=False, nocomp=False, hmode=0, hsleep=None, htest=None, swapkv=False):
    a = A()
    N = KNAME
    lab = lambda s: f"L_{s}"
    def sleep(n):
        g = f"\ns_add_u32 s97, s97, 1\ns_cmp_gt_u32 s97, 0x40000\ns_cbranch_scc1 {lab('done')}" if guard else ""
        return f"s_sleep {n}" + g
    def srd(base, plo, phi, size):
        a(f"s_mov_b32 s{base}, s{plo}\ns_and_b32 s{base+1}, s{phi}, 0xffff\ns_mov_b32 s{base+2}, {size}\ns_mov_b32 s{base+3}, 0x20000")
    def stamp(idx, vst):
        if stamps:
            a(f"s_memrealtime s[98:99]\ns_waitcnt lgkmcnt(0)\nv_writelane_b32 v{vst}, s98, {idx}")
    def stamp_s(sidx, add, vst):
        if stamps:
            a(f"s_add_u32 s96, {sidx}, {add}\ns_mov_b32 m0, s96\ns_memrealtime s[98:99]\ns_waitcnt lgkmcnt(0)\nv_writelane_b32 v{vst}, s98, m0")
    def stamp_store(vst, vtmp, slot):
        if stamps:
            a(f"s_lshl_b32 s98, s2, 3\ns_add_u32 s98, s98, {slot}\ns_lshl_b32 s98, s98, 8\ns_add_u32 s98, s98, {ST_OFF}")
            a(f"v_mbcnt_lo_u32_b32 v{vtmp}, -1, 0\nv_mbcnt_hi_u32_b32 v{vtmp}, -1, v{vtmp}\nv_lshlrev_b32 v{vtmp}, 2, v{vtmp}")
            a(f"buffer_store_dword v{vst}, v{vtmp}, s[32:35], s98 offen\ns_waitcnt vmcnt(0)")
    def ldswait(tag, vaddr, vtmp, target, slp, cmp="s_cmp_ge_i32"):
        a(f"{lab(tag)}:\nds_read_b32 v{vtmp}, v{vaddr}\ns_waitcnt lgkmcnt(0)\nv_readfirstlane_b32 s50, v{vtmp}\n{cmp} s50, {target}\ns_cbranch_scc1 {lab(tag+'_ok')}\n{sleep(slp)}\ns_branch {lab(tag)}\n{lab(tag+'_ok')}:")
    def one_lane(instr):
        a(f"s_mov_b64 exec, 1\n{instr}\ns_mov_b64 exec, -1")
    COL0 = "s_mov_b32 s46, 0x00010001\ns_mov_b32 s47, 0x00010001\ns_mov_b64 exec, s[46:47]"

    a(f"{N}:")
    a(f"s_cmp_ge_u32 s2, 256\ns_cbranch_scc1 {lab('done')}")
    a("s_load_dwordx16 s[4:19], s[0:1], 0")
    if guard: a("s_mov_b32 s97, 0")
    a("v_lshrrev_b32 v1, 6, v0\nv_and_b32 v2, 63, v0")
    a("s_and_b32 s3, s2, 7\ns_lshr_b32 s24, s2, 3")
    a("v_readfirstlane_b32 s20, v1")
    a("s_and_b32 s21, s24, 15\ns_lshr_b32 s24, s24, 4\ns_lshl_b32 s24, s24, 3\ns_add_u32 s22, s24, s3\ns_lshl_b32 s23, s21, 2")
    a(f"s_cmp_lt_u32 s20, 4\ns_cbranch_scc1 {lab('consumer')}")
    a(f"s_cmp_eq_u32 s20, 5\ns_cbranch_scc1 {lab('helper')}")

    vL16 = 3; vLand = 4; vT = 5; vC = 8; vST = 12
    a(f"v_lshlrev_b32 v{vL16}, 4, v2\nv_mov_b32 v{vLand}, {FL_LAND}\nv_mov_b32 v6, {FL_CONS}")
    a("s_lshl_b32 s40, s23, 22\ns_lshl_b32 s41, s22, 18\ns_add_u32 s40, s40, s41")
    if stamps: a(f"v_mov_b32 v{vST}, 0")
    a("s_waitcnt lgkmcnt(0)")
    srd(24, 6, 7, 0x10000000)
    srd(32, 18, 19, WS_SIZE)
    a("s_barrier")
    stamp(0, vST)
    if stamps: a("s_memtime s[62:63]\ns_waitcnt lgkmcnt(0)")
    a(f"s_mov_b32 s41, 0\ns_mov_b32 s60, 0\nds_read_b128 {vr(vC,4)}, v6")
    def loader_loop(tag, flags, uend):
        a(f"{lab(tag)}:")
        a("s_lshr_b32 s42, s41, 3\ns_and_b32 s42, s42, 3\ns_lshl_b32 s42, s42, 22\ns_and_b32 s43, s41, 7\ns_lshl_b32 s43, s43, 15\ns_add_u32 s42, s42, s43\ns_add_u32 s42, s42, s40")
        if lin: a("s_and_b32 s42, s41, 31\ns_lshl_b32 s42, s42, 15\ns_lshl_b32 s43, s2, 20\ns_add_u32 s42, s42, s43")
        a("s_and_b32 s43, s41, 1\ns_lshl_b32 s43, s43, 15\ns_lshl_b32 s44, s41, 5\ns_sub_u32 s45, s41, 1")
        for grp in range(4):
            if nocons and not fakecons or nochk: a(f"s_branch {lab(f'{tag}c{grp}_ok2')}")
            a(f"s_waitcnt lgkmcnt(0)\nv_readfirstlane_b32 s50, v{vC+grp}\ns_cmp_ge_i32 s50, s45\ns_cbranch_scc1 {lab(f'{tag}c{grp}_ok')}")
            a(f"{lab(f'{tag}c{grp}')}:\nds_read_b128 {vr(vC,4)}, v6\ns_waitcnt lgkmcnt(0)\nv_readfirstlane_b32 s50, v{vC+grp}\ns_cmp_ge_i32 s50, s45\ns_cbranch_scc1 {lab(f'{tag}c{grp}_ok')}\ns_add_u32 s60, s60, 1\n{sleep(1)}\ns_branch {lab(f'{tag}c{grp}')}\n{lab(f'{tag}c{grp}_ok')}:")
            a(f"ds_read_b128 {vr(vC,4)}, v6\n{lab(f'{tag}c{grp}_ok2')}:")
            for half in range(2):
                off = grp * 8192 + half * 4096
                a(f"s_add_u32 m0, s43, {off}\ns_add_u32 s48, s42, {off}")
                for pp in range(4):
                    p = grp * 8 + half * 4 + pp
                    a(f"s_waitcnt vmcnt({W-1})")
                    if (p - W + 1) % 8 == 0:
                        a(f"s_add_i32 s51, s44, {p-W+1}\nv_mov_b32 v{vT}, s51")
                        one_lane(f"ds_write_b32 v{vLand}, v{vT}")
                    a(f"buffer_load_dwordx4 v{vL16}, s[24:27], s48 offen offset:{pp*1024} {flags} lds")
        if stamps:
            a(f"s_and_b32 s49, s41, 7\ns_cmp_eq_u32 s49, 7\ns_cbranch_scc0 {lab(tag+'nost')}\ns_lshr_b32 s49, s41, 3")
            stamp_s("s49", 1, vST)
            a(f"{lab(tag+'nost')}:")
        a(f"s_add_u32 s41, s41, 1\ns_cmp_lt_u32 s41, {uend}\ns_cbranch_scc1 {lab(tag)}")
    if swapkv: a("s_mov_b32 s24, s8\ns_and_b32 s25, s9, 0xffff")
    loader_loop("lk", kflags, 32)
    if swapkv: a("s_mov_b32 s24, s6\ns_and_b32 s25, s7, 0xffff")
    else: a("s_mov_b32 s24, s8\ns_and_b32 s25, s9, 0xffff")
    loader_loop("lv", vflags, 64)
    tot = 2048
    for tgt in range(((tot - W + 1) + 7) // 8 * 8, tot + 1, 8):
        a(f"s_waitcnt vmcnt({tot - tgt})\nv_mov_b32 v{vT}, {tgt}")
        one_lane(f"ds_write_b32 v{vLand}, v{vT}")
    a("s_waitcnt lgkmcnt(0)")
    stamp(9, vST)
    if stamps: a(f"s_memtime s[64:65]\ns_waitcnt lgkmcnt(0)\ns_sub_u32 s64, s64, s62\nv_writelane_b32 v{vST}, s64, 29")
    if stamps: a(f"s_getreg_b32 s49, hwreg(HW_REG_XCC_ID)\nv_writelane_b32 v{vST}, s49, 30\nv_writelane_b32 v{vST}, s60, 31")
    stamp_store(vST, vT, 2)
    a(f"s_branch {lab('done')}")

    a(f"{lab('consumer')}:")
    R = 4; Qr = 36; EF = 52; ACC = 116; X = 132; TMP = 140; BB = 148; W4 = 156
    vRdK = 160; vRdV = 161; vSa = 162; vBa = 163; vPsa = 164; vWs = 165; vOa = 166; vLand = 167; vCons = 168; vT = 169; vA = 170
    vOne = 171; vFl = 172; vST = 173; vG16 = 174; vWs0 = 175; vT2 = 3
    Aa = X; DD = ACC
    a(f"v_and_b32 v{vT}, 31, v2\nv_lshlrev_b32 v{vT}, 4, v{vT}\ns_lshl_b32 s41, s23, 9")
    a("s_waitcnt lgkmcnt(0)")
    srd(36, 4, 5, 32768)
    for g in range(4):
        a(f"buffer_load_dwordx4 {vr(Qr+4*g,4)}, v{vT}, s[36:39], s41 offen offset:{g*512}")
    srd(32, 18, 19, WS_SIZE)
    a(f"s_lshl_b32 s40, s20, 13")
    a(f"v_lshlrev_b32 v{vRdK}, 4, v2\nv_add_u32 v{vRdK}, s40, v{vRdK}")
    a(f"v_lshrrev_b32 v{vG16}, 4, v2\nv_lshlrev_b32 v{vRdV}, 11, v{vG16}\nv_and_b32 v{vT}, 15, v2\nv_lshlrev_b32 v{vT}, 4, v{vT}\nv_add_u32 v{vRdV}, v{vRdV}, v{vT}\nv_add_u32 v{vRdV}, s40, v{vRdV}")
    a(f"v_lshlrev_b32 v{vG16}, 4, v{vG16}")
    a(f"s_lshl_b32 s42, s20, 9\ns_add_u32 s42, s42, {SS}")
    a(f"v_and_b32 v{vSa}, 16, v2\nv_lshrrev_b32 v{vSa}, 2, v{vSa}\nv_and_b32 v{vT}, 8, v2\nv_add_u32 v{vSa}, v{vSa}, v{vT}")
    a(f"v_and_b32 v{vT}, 4, v2\nv_lshlrev_b32 v{vT}, 2, v{vT}\nv_add_u32 v{vSa}, v{vSa}, v{vT}")
    a(f"v_lshrrev_b32 v{vT}, 5, v2\nv_lshlrev_b32 v{vT}, 1, v{vT}\nv_add_u32 v{vSa}, v{vSa}, v{vT}\nv_add_u32 v{vSa}, s42, v{vSa}")
    a(f"v_and_b32 v{vT}, 1, v2\nv_lshlrev_b32 v{vBa}, 8, v{vT}\nv_add_u32 v{vBa}, v{vBa}, v{vG16}\nv_add_u32 v{vBa}, s42, v{vBa}")
    a(f"v_add_u32 v{vWs0}, s42, v{vG16}")
    a(f"s_lshl_b32 s43, s20, 8\ns_add_u32 s43, s43, {PS}\nv_add_u32 v{vPsa}, s43, v{vG16}")
    a(f"v_lshrrev_b32 v{vOa}, 5, v2\nv_lshlrev_b32 v{vOa}, 9, v{vOa}\nv_and_b32 v{vT}, 15, v2\nv_lshlrev_b32 v{vT}, 5, v{vT}\nv_add_u32 v{vOa}, v{vOa}, v{vT}")
    a(f"v_and_b32 v{vT}, 16, v2\nv_lshrrev_b32 v{vT}, 2, v{vT}\nv_add_u32 v{vOa}, v{vOa}, v{vT}\ns_lshl_b32 s43, s20, 10\ns_add_u32 s43, s43, {OP}\nv_add_u32 v{vOa}, s43, v{vOa}")
    a(f"v_mov_b32 v{vLand}, {FL_LAND}\ns_lshl_b32 s43, s20, 2\ns_add_u32 s43, s43, {FL_CONS}\nv_mov_b32 v{vCons}, s43\nv_mov_b32 v{vOne}, 1")
    a("s_mov_b32 s55, 0xffff0000")
    if stamps: a(f"v_mov_b32 v{vST}, 0")
    a("s_barrier")
    if nocons: a(f"s_branch {lab('done')}")
    stamp(0, vST)
    a("s_waitcnt vmcnt(0)")
    a("s_mov_b32 s41, 0\ns_lshl_b32 s44, s20, 3\ns_add_u32 s44, s44, 8")

    def unit_head(tag, vbase):
        ldswait(tag, vLand, vT, "s44", csleep)
        a(f"s_and_b32 s45, s41, 1\ns_lshl_b32 s45, s45, 15\nv_add_u32 v{vA}, s45, v{vbase}")
    def signal_consumed():
        a(f"s_add_u32 s45, s41, 1\nv_mov_b32 v{vT}, s45")
        one_lane(f"ds_write_b32 v{vCons}, v{vT}")

    a(f"{lab('kunit')}:")
    unit_head("kw", vRdK)
    for t in range(8 if not noread else 0): a(f"ds_read_b128 {vr(R+4*t,4)}, v{vA} offset:{t*1024}")
    for t in range(8):
        a(f"s_waitcnt lgkmcnt({7-t})")
        if t == 7: signal_consumed()
        if noread or nocomp: continue
        r = R + 4 * t
        a(f"v_dot2_f32_bf16 v{Aa+t}, v{r}, v{Qr}, 0")
        for i in range(1, 4): a(f"v_dot2_f32_bf16 v{Aa+t}, v{r+i}, v{Qr+i}, v{Aa+t}")
    a("s_nop 0")
    for p in range(4): a(f"v_permlane16_swap_b32 v{Aa+2*p}, v{Aa+2*p+1}")
    for p in range(4): a(f"v_add_f32 v{TMP+p}, v{Aa+2*p}, v{Aa+2*p+1}")
    c0, c1, d = TMP + 4, TMP + 5, TMP + 6
    a(f"v_add_f32_dpp v{c0}, v{TMP}, v{TMP} row_ror:8 row_mask:0xf bank_mask:0x3")
    a(f"v_add_f32_dpp v{c0}, v{TMP+1}, v{TMP+1} row_ror:8 row_mask:0xf bank_mask:0xc")
    a(f"v_add_f32_dpp v{c1}, v{TMP+2}, v{TMP+2} row_ror:8 row_mask:0xf bank_mask:0x3")
    a(f"v_add_f32_dpp v{c1}, v{TMP+3}, v{TMP+3} row_ror:8 row_mask:0xf bank_mask:0xc")
    a("s_nop 0")
    a(f"v_add_f32_dpp v{d}, v{c0}, v{c0} row_half_mirror row_mask:0xf bank_mask:0x5")
    a(f"v_add_f32_dpp v{d}, v{c1}, v{c1} row_half_mirror row_mask:0xf bank_mask:0xa")
    a("s_nop 1")
    a(f"v_add_f32_dpp v{d}, v{d}, v{d} quad_perm:[1,0,3,2] row_mask:0xf bank_mask:0xf")
    a("s_nop 1")
    a(f"v_add_f32_dpp v{d}, v{d}, v{d} quad_perm:[2,3,0,1] row_mask:0xf bank_mask:0xf")
    a(f"v_cvt_pk_bf16_f32 v{c0}, v{d}, v{d}")
    a(f"s_and_b32 s45, s41, 7\ns_lshl_b32 s46, s45, 5\nv_add_u32 v{vT}, s46, v{vSa}")
    a(f"v_lshlrev_b32 v{c1}, 16, v{c0}")
    a(f"ds_write_b16 v{vT}, v{c0}")
    a(f"v_sub_f32 v{c1}, v{d}, v{c1}")
    a(f"v_cvt_pk_bf16_f32 v{TMP}, v{c1}, v{c1}")
    a(f"ds_write_b16 v{vT}, v{TMP} offset:256")
    a(f"s_cmp_eq_u32 s45, 7\ns_cbranch_scc0 {lab('knoend')}")
    a(f"s_cmp_eq_u32 s41, 7\ns_cbranch_scc0 {lab('noE')}")
    a(f"v_mov_b32 v{vFl}, {FL_E}")
    ldswait("wE", vFl, vT, "1", 2)
    a(f"v_and_b32 v{vT}, 15, v2\nv_mul_u32_u24 v{vA}, {SROW}, v{vT}\nv_lshrrev_b32 v{vT}, 5, v2\nv_lshlrev_b32 v{vT}, 7, v{vT}\nv_add_u32 v{vA}, v{vA}, v{vT}")
    a(f"v_and_b32 v{vT}, 16, v2\nv_add_u32 v{vA}, v{vA}, v{vT}\ns_lshl_b32 s45, s20, 5\ns_add_u32 s45, s45, {STAGE}\nv_add_u32 v{vA}, s45, v{vA}")
    for tl in range(4):
        for ks in range(4):
            a(f"ds_read_b128 {vr(EF+16*tl+4*ks,4)}, v{vA} offset:{tl*16*SROW+ks*256}")
        a("s_waitcnt lgkmcnt(4)")
    a(f"{lab('noE')}:")
    a("s_waitcnt lgkmcnt(0)")
    for ks in range(4): a(f"ds_read_b128 {vr(R+4*ks,4)}, v{vBa} offset:{ks*64}")
    for ks in range(4):
        a(f"s_waitcnt lgkmcnt({3-ks})")
        for tl in range(4):
            c = "0" if ks == 0 else vr(DD+4*tl, 4)
            a(f"v_mfma_f32_16x16x32_bf16 {vr(DD+4*tl,4)}, {vr(EF+16*tl+4*ks,4)}, {vr(R+4*ks,4)}, {c}")
    a(f"s_lshr_b32 s45, s41, 3\ns_lshl_b32 s48, s45, 10\nv_add_u32 v{vA}, s48, v{vPsa}\ns_lshl_b32 s48, s45, 2\ns_add_u32 s48, s48, {FL_S}\nv_mov_b32 v{vFl}, s48")
    a("s_nop 4")
    for i in range(16):
        a(f"v_add_f32_dpp v{DD+i}, v{DD+i}, v{DD+i} quad_perm:[1,0,3,2] row_mask:0xf bank_mask:0xf")
    a(COL0)
    for tl in range(4): a(f"ds_write_b128 v{vA}, {vr(DD+4*tl,4)} offset:{tl*64}")
    a("s_mov_b64 exec, -1\ns_waitcnt lgkmcnt(0)")
    one_lane(f"ds_add_u32 v{vFl}, v{vOne}")
    for i in range(12): a(f"v_mov_b32 v{Qr+i}, v{Qr+4+i}")
    stamp_s("s45", 1, vST)
    a(f"{lab('knoend')}:")
    a(f"s_add_u32 s41, s41, 1\ns_add_u32 s44, s44, 32\ns_cmp_lt_u32 s41, 32\ns_cbranch_scc1 {lab('kunit')}")

    a(f"v_mov_b32 v{vFl}, {FL_F}")
    ldswait("wF", vFl, vT, "1", 2)
    a(f"v_and_b32 v{vT}, 15, v2\nv_lshrrev_b32 v{vT}, 2, v{vT}\nv_lshrrev_b32 v{vA}, 4, v2\nv_lshl_add_u32 v{vA}, v{vA}, 3, v{vT}\nv_mul_u32_u24 v{vA}, {SROW}, v{vA}")
    a(f"v_and_b32 v{vT}, 3, v2\nv_lshlrev_b32 v{vT}, 3, v{vT}\nv_add_u32 v{vA}, v{vA}, v{vT}\ns_lshl_b32 s45, s20, 5\ns_add_u32 s45, s45, {STAGE}\nv_add_u32 v{vA}, s45, v{vA}")
    n = 0
    for uu in range(8):
        for ks in range(2):
            for hf in range(2):
                a(f"ds_read_b64_tr_b16 {vr(EF+(uu*2+ks)*4+2*hf,2)}, v{vA} offset:{(32*ks+4*hf)*SROW+uu*128}")
                n += 1
                if n % 8 == 0: a("s_waitcnt lgkmcnt(4)")
    a("s_waitcnt lgkmcnt(0)")
    for i in range(16): a(f"v_mov_b32 v{ACC+i}, 0")
    stamp(5, vST)

    a(f"{lab('vhead')}:")
    a(f"s_lshr_b32 s45, s41, 3\ns_and_b32 s45, s45, 3\ns_lshl_b32 s48, s45, 2\ns_add_u32 s48, s48, {FL_P}\nv_mov_b32 v{vFl}, s48")
    ldswait("wP", vFl, vT, "1", 2)
    a(f"s_lshl_b32 s48, s45, 8\ns_add_u32 s48, s48, {PK}\nv_and_b32 v{vT}, 1, v2\nv_lshlrev_b32 v{vT}, 7, v{vT}\nv_add_u32 v{vT}, v{vT}, v{vG16}\nv_add_u32 v{vT}, s48, v{vT}")
    a(f"ds_read_b128 {vr(BB,4)}, v{vT}\nds_read_b128 {vr(BB+4,4)}, v{vT} offset:64\ns_waitcnt lgkmcnt(0)")
    for uu in range(8):
        a(f"v_mfma_f32_16x16x32_bf16 {vr(R+4*uu,4)}, {vr(EF+uu*8,4)}, {vr(BB,4)}, 0")
    for uu in range(8):
        a(f"v_mfma_f32_16x16x32_bf16 {vr(R+4*uu,4)}, {vr(EF+uu*8+4,4)}, {vr(BB+4,4)}, {vr(R+4*uu,4)}")
    a("s_nop 7")
    for i in range(32):
        a(f"v_add_f32_dpp v{R+i}, v{R+i}, v{R+i} quad_perm:[1,0,3,2] row_mask:0xf bank_mask:0xf")
    a(COL0)
    for uu in range(8): a(f"ds_write_b128 v{vWs0}, {vr(R+4*uu,4)} offset:{uu*64}")
    a(f"s_mov_b64 exec, -1\nv_mov_b32 v{vWs}, v{vWs0}\ns_waitcnt lgkmcnt(0)")
    a(f"{lab('vunit')}:")
    unit_head("vw", vRdV)
    a(f"ds_read_b128 {vr(W4,4)}, v{vWs}")
    for i in range(4 if not noread else 0):
        for hf in range(2):
            a(f"ds_read_b128 {vr(R+4*(2*i+hf),4)}, v{vA} offset:{i*512+hf*256}")
    for k in range(8):
        i, hf = k >> 1, k & 1
        a(f"s_waitcnt lgkmcnt({7-k})")
        if k == 7: signal_consumed()
        if noread or nocomp: continue
        r = R + 4 * k
        for e in range(4):
            a(f"v_lshlrev_b32 v{X+2*e}, 16, v{r+e}\nv_and_b32 v{X+2*e+1}, s55, v{r+e}")
        wp = W4 + (i & ~1)
        sel = "op_sel_hi:[1,0,1]" if i % 2 == 0 else "op_sel:[0,1,0] op_sel_hi:[1,1,1]"
        for e in range(4):
            ac = ACC + 8 * hf + 2 * e
            a(f"v_pk_fma_f32 {vr(ac,2)}, {vr(X+2*e,2)}, {vr(wp,2)}, {vr(ac,2)} {sel}")
    a(f"v_add_u32 v{vWs}, 64, v{vWs}")
    a(f"s_and_b32 s45, s41, 7\ns_add_u32 s41, s41, 1\ns_add_u32 s44, s44, 32\ns_cmp_eq_u32 s45, 7\ns_cbranch_scc0 {lab('vunit')}")
    a("s_sub_u32 s45, s41, 33\ns_lshr_b32 s45, s45, 3")
    for e in range(8): a(f"v_permlane32_swap_b32 v{ACC+e}, v{ACC+8+e}")
    for e in range(8): a(f"v_add_f32 v{X+e}, v{ACC+e}, v{ACC+8+e}")
    a(f"s_lshl_b32 s48, s45, 12\nv_add_u32 v{vA}, s48, v{vOa}\ns_lshl_b32 s48, s45, 2\ns_add_u32 s48, s48, {FL_O}\nv_mov_b32 v{vFl}, s48")
    for q in range(4): a(f"v_permlane16_swap_b32 v{X+2*q}, v{X+2*q+1}")
    for q in range(4): a(f"v_add_f32 v{TMP+q}, v{X+2*q}, v{X+2*q+1}")
    for q in range(4): a(f"ds_write_b32 v{vA}, v{TMP+q} offset:{8*q}")
    for i in range(16): a(f"v_mov_b32 v{ACC+i}, 0")
    a("s_waitcnt lgkmcnt(0)")
    one_lane(f"ds_add_u32 v{vFl}, v{vOne}")
    stamp_s("s45", 6, vST)
    a(f"s_cmp_lt_u32 s41, 64\ns_cbranch_scc1 {lab('vhead')}")
    if stamps:
        a(f"s_cmp_eq_u32 s20, 0\ns_cbranch_scc0 {lab('done')}")
        stamp_store(vST, vT, 0)
    a(f"s_branch {lab('done')}")

    a(f"{lab('helper')}:")
    if hprio: a(f"s_setprio {hprio}")
    vL16 = 3; vZ = 4; vOne = 5; vL4 = 10; vP = 13; vT1 = 14; vT2 = 15; vFl = 18; vST = 19; vOr = 20; vPsr = 21; vMo = 22
    AA = 48
    a(f"v_lshlrev_b32 v{vL4}, 2, v2\nv_mov_b32 v{vZ}, 0\nv_add_u32 v{vT1}, {FLAGS}, v{vL4}\nds_write_b32 v{vT1}, v{vZ}")
    a(f"v_lshlrev_b32 v{vL16}, 4, v2\nv_mov_b32 v{vOne}, 1")
    if dbgtime: a("s_memrealtime s[98:99]")
    a("s_waitcnt lgkmcnt(0)\ns_barrier")
    if fakehelp:
        a(f"v_mov_b32 v{vT1}, {FL_P}\nv_mov_b32 v24, 1\nv_mov_b32 v25, 1\nv_mov_b32 v26, 1\nv_mov_b32 v27, 1\nds_write_b128 v{vT1}, v[24:27]\nds_write_b128 v{vT1}, v[24:27] offset:16\ns_waitcnt lgkmcnt(0)\ns_branch {lab('done')}")
    if fakecons: a(f"v_mov_b32 v{vT1}, {FL_CONS}\nv_mov_b32 v24, 1000\nv_mov_b32 v25, 1000\nv_mov_b32 v26, 1000\nv_mov_b32 v27, 1000\nds_write_b128 v{vT1}, v[24:27]\ns_waitcnt lgkmcnt(0)")
    if htest:
        srd(32, 18, 19, WS_SIZE)
        a(f"v_mov_b32 v{vFl}, {FL_LAND}\ns_mov_b32 s42, 200\ns_lshl_b32 s46, s2, 10\ns_add_u32 s46, s46, {O_OFF}\ns_lshr_b32 s47, s2, 2\ns_lshl_b32 s47, s47, 8\ns_add_u32 s47, s47, {C_OFF}")
        a(f"s_lshr_b32 s45, s2, 4\ns_lshl_b32 s45, s45, 14\ns_add_u32 s45, s45, {O_OFF}")
        a(f"{lab('ht')}:")
        ldswait("htw", vFl, vT1, "s42", 16)
        for op in htest.split("+"):
            if op == "st1k": a(f"buffer_store_dwordx4 {vr(AA,4)}, v{vL16}, s[32:35], s46 offen sc1\ns_waitcnt vmcnt(0)")
            if op == "st1kp": a(f"buffer_store_dwordx4 {vr(AA,4)}, v{vL16}, s[32:35], s46 offen\ns_waitcnt vmcnt(0)")
            if op == "st1knt": a(f"buffer_store_dwordx4 {vr(AA,4)}, v{vL16}, s[32:35], s46 offen sc1 nt\ns_waitcnt vmcnt(0)")
            if op == "st256": a(f"buffer_store_dword v{AA}, v{vL4}, s[32:35], s46 offen sc1\ns_waitcnt vmcnt(0)")
            if op == "at":
                one_lane(f"buffer_atomic_add v{vOne}, v{vZ}, s[32:35], s47 offen offset:8 sc0")
                a(f"s_waitcnt vmcnt(0)\nv_mov_b32 v{vOne}, 1")
            if op == "ld16":
                for jj in range(16):
                    a(f"buffer_load_dwordx4 {vr(AA+4*jj,4)}, v{vL16}, s[32:35], s45 offen offset:{(jj%4)*1024} sc1")
                a("s_waitcnt vmcnt(0)")
            if op == "ld1": a(f"buffer_load_dword v{AA+8}, v{vL4}, s[32:35], s46 offen sc1\ns_waitcnt vmcnt(0)")
            if op == "st16x256":
                for m in range(16): a(f"buffer_store_dword v{AA}, v{vL4}, s[32:35], s45 offen offset:{m*256} sc1")
        a(f"s_add_u32 s42, s42, 256\ns_cmp_lt_u32 s42, 2048\ns_cbranch_scc1 {lab('ht')}\ns_branch {lab('done')}")
    if nocons or nohelp: a(f"s_branch {lab('done')}")
    if dbgtime:
        a(f"s_not_b32 s98, s98\nv_mov_b32 v{vT1}, s98")
        one_lane(f"global_atomic_umax v{vZ}, v{vT1}, s[16:17] offset:8")
    srd(24, 10, 11, 0x100000)
    srd(28, 12, 13, 0x100000)
    srd(32, 18, 19, WS_SIZE)
    srd(36, 14, 15, 32768)
    if stamps: a(f"v_mov_b32 v{vST}, 0")
    stamp(0, vST)
    def dma(tag, srdname):
        if noef or hmode == 2:
            a("s_waitcnt vmcnt(0)")
            return
        a(f"s_mov_b32 s40, {STAGE}\ns_lshl_b32 s41, s22, 10\ns_mov_b32 s43, 64\n{lab(tag)}:")
        a(f"s_mov_b32 m0, s40\ns_add_u32 s40, s40, {SROW}\nbuffer_load_dwordx4 v{vL16}, {srdname}, s41 offen {eflags} lds")
        a(f"s_add_u32 s41, s41, 16384\ns_waitcnt vmcnt({dmadepth-1})\ns_sub_u32 s43, s43, 1\ns_cmp_lg_u32 s43, 0\ns_cbranch_scc1 {lab(tag)}")
        a("s_waitcnt vmcnt(0)")
    a(f"s_lshl_b32 s58, s21, 8\ns_add_u32 s58, s58, {C_OFF}")
    a(f"s_lshl_b32 s59, s23, 8\ns_add_u32 s59, s59, {M_OFF}")
    a(f"s_cmp_lg_u32 s22, 0\ns_cbranch_scc1 {lab('noreset')}")
    for i in range(4): a(f"v_mov_b32 v{AA+i}, 0\nv_mov_b32 v{AA+4+i}, -1")
    one_lane(f"buffer_store_dwordx4 {vr(AA,4)}, v{vZ}, s[32:35], s58 offen sc1")
    a(f"buffer_store_dwordx4 {vr(AA+4,4)}, v{vL16}, s[32:35], s59 offen sc1")
    a(f"s_lshl_b32 s46, s21, 4\nv_mov_b32 v{vT1}, s46\ns_waitcnt vmcnt(0)")
    one_lane(f"global_store_dword v{vT1}, v{vOne}, s[16:17] sc1")
    a(f"{lab('noreset')}:")
    dma("edma", "s[24:27]")
    a(f"v_mov_b32 v{vFl}, {FL_E}\nds_write_b32 v{vFl}, v{vOne}")
    stamp(1, vST)
    vSr = 21; vL8 = 23
    a(f"v_add_u32 v{vOr}, {OP}, v{vL16}\nv_lshlrev_b32 v{vL8}, 3, v2")
    a(f"v_lshrrev_b32 v{vSr}, 4, v2\nv_and_b32 v{vSr}, 1, v{vSr}\nv_lshlrev_b32 v{vSr}, 10, v{vSr}\nv_and_b32 v{vT1}, 15, v2\nv_lshlrev_b32 v{vT1}, 4, v{vT1}\nv_add_u32 v{vSr}, v{vSr}, v{vT1}\nv_add_u32 v{vSr}, {PS}, v{vSr}")
    a(f"v_and_b32 v{vMo}, 1, v2\nv_lshlrev_b32 v{vMo}, 7, v{vMo}\nv_lshrrev_b32 v{vT1}, 1, v2\nv_lshlrev_b32 v{vT1}, 2, v{vT1}\nv_add_u32 v{vMo}, v{vMo}, v{vT1}")

    def wave_reduce(op, v, t1, t2):
        for ror in (8, 4, 2, 1):
            a(f"s_nop 1\n{op}_dpp v{v}, v{v}, v{v} row_ror:{ror} row_mask:0xf bank_mask:0xf")
        a(f"v_mov_b32 v{t1}, v{v}\nv_mov_b32 v{t2}, v{v}\ns_nop 1\nv_permlane16_swap_b32 v{t1}, v{t2}\n{op} v{v}, v{t1}, v{t2}")
        a(f"s_nop 0\nv_mov_b32 v{t1}, v{v}\nv_mov_b32 v{t2}, v{v}\ns_nop 1\nv_permlane32_swap_b32 v{t1}, v{t2}\n{op} v{v}, v{t1}, v{t2}")
    def wait_s(g):
        a(f"v_mov_b32 v{vFl}, {FL_S+4*g}")
        ldswait(f"s{g}w", vFl, vT1, "4", hsleep or 4)
    def s_publish(rd):
        t = f"r{rd}"
        if hmode in (1, 2, 4): return
        for w in range(4): a(f"ds_read_b128 {vr(AA+4*w,4)}, v{vSr} offset:{rd*2048+w*256}")
        a(f"s_lshl_b32 s45, s21, 1\ns_add_u32 s45, s45, {rd}\ns_lshl_b32 s45, s45, 13\ns_add_u32 s45, s45, {P_OFF}\ns_lshl_b32 s46, s22, 9\ns_add_u32 s46, s46, s45")
        a("s_waitcnt lgkmcnt(0)")
        for i in range(4): a(f"v_add_f32 v{AA+i}, v{AA+i}, v{AA+4+i}\nv_add_f32 v{AA+8+i}, v{AA+8+i}, v{AA+12+i}")
        for i in range(4): a(f"v_add_f32 v{AA+i}, v{AA+i}, v{AA+8+i}")
        a(f"s_mov_b32 exec_hi, 0\nbuffer_store_dwordx4 {vr(AA,4)}, v{vL16}, s[32:35], s46 offen sc1\ns_mov_b64 exec, -1")
        a(f"v_mov_b32 v{vT2}, 1")
        a("s_waitcnt vmcnt(0)")
        one_lane(f"buffer_atomic_add v{vT2}, v{vZ}, s[32:35], s58 offen offset:{4*rd} sc0")
        stamp(2 + 4 * rd, vST)
        a(f"s_waitcnt vmcnt(0)\nv_readfirstlane_b32 s50, v{vT2}")
        a(f"s_cmp_eq_u32 s50, 15\ns_cbranch_scc0 {lab(t+'_nl')}")
        for jj in range(16):
            if jj % 8 == 0 and jj: a("s_add_u32 s45, s45, 4096")
            for h in range(2):
                a(f"buffer_load_dword v{AA+16*h+jj}, v{vL4}, s[32:35], s45 offen offset:{(jj%8)*512+h*256} sc1")
        a("s_waitcnt vmcnt(0)")
        for h in range(2):
            B0 = AA + 16 * h
            T = AA + 40
            for st in (8, 4, 2, 1):
                for i in range(st): a(f"v_add_f32 v{B0+i}, v{B0+i}, v{B0+i+st}")
            a(f"v_mul_f32 v{vP}, 0x3db8aa3b, v{B0}")
            a(f"v_mov_b32 v{T+1}, v{vP}")
            wave_reduce("v_max_f32", T + 1, T + 2, T + 3)
            a(f"v_sub_f32 v{vP}, v{vP}, v{T+1}\nv_exp_f32 v{vP}, v{vP}\ns_nop 0\nv_mov_b32 v{T+1}, v{vP}")
            wave_reduce("v_add_f32", T + 1, T + 2, T + 3)
            a(f"v_rcp_f32 v{T+1}, v{T+1}\ns_nop 0\nv_mul_f32 v{vP}, v{vP}, v{T+1}")
            a(f"v_cvt_pk_bf16_f32 v{T}, v{vP}, v{vP}\nv_lshlrev_b32 v{T}, 16, v{T}\nv_sub_f32 v{T+1}, v{vP}, v{T}\ns_nop 1")
            a(f"v_mov_b32_dpp v{T+2}, v{vP} quad_perm:[1,0,3,2] row_mask:0xf bank_mask:0xf")
            a(f"v_mov_b32_dpp v{T+3}, v{T+1} quad_perm:[1,0,3,2] row_mask:0xf bank_mask:0xf")
            a(f"v_cvt_pk_bf16_f32 v{T+4}, v{vP}, v{T+2}\nv_cvt_pk_bf16_f32 v{T+5}, v{T+3}, v{T+1}")
            a(f"v_and_b32 v{T+6}, 1, v2\nv_cmp_eq_u32 vcc, 1, v{T+6}\ns_nop 1\nv_cndmask_b32 v{T+4}, v{T+4}, v{T+5}, vcc")
            a(f"v_mov_b32 v{T+5}, 0x7fc07fc0\nv_cmp_eq_u32 vcc, -1, v{T+4}\ns_nop 1\nv_cndmask_b32 v{T+8+h}, v{T+4}, v{T+5}, vcc")
        for h in range(2):
            a(f"buffer_store_dword v{AA+48+h}, v{vMo}, s[32:35], s59 offen offset:{(2*rd+h)*256} sc1")
        a(f"{lab(t+'_nl')}:")
        stamp(3 + 4 * rd, vST)
    def p_fetch(rd):
        t = f"p{rd}"
        if hmode in (1, 2, 4):
            a(f"v_mov_b32 v{vFl}, {FL_P+8*rd}\nds_write_b32 v{vFl}, v{vOne}\nds_write_b32 v{vFl}, v{vOne} offset:4")
            return
        a(f"{lab(t)}:\nbuffer_load_dwordx2 {vr(AA,2)}, v{vL8}, s[32:35], s59 offen offset:{rd*512} sc1\ns_waitcnt vmcnt(0)\nv_cmp_eq_u32 vcc, -1, v{AA}\nv_cmp_eq_u32 s[46:47], -1, v{AA+1}\ns_nop 1\ns_or_b64 vcc, vcc, s[46:47]\ns_cmp_eq_u64 vcc, 0\ns_cbranch_scc1 {lab(t+'_ok')}\n{sleep(msleep)}\ns_branch {lab(t)}\n{lab(t+'_ok')}:")
        a(f"v_add_u32 v{vT1}, {PK+rd*512}, v{vL8}\nds_write_b64 v{vT1}, {vr(AA,2)}\nv_mov_b32 v{vFl}, {FL_P+8*rd}\ns_waitcnt lgkmcnt(0)\nds_write_b32 v{vFl}, v{vOne}\nds_write_b32 v{vFl}, v{vOne} offset:4")
        stamp(4 + 4 * rd, vST)

    wait_s(0)
    dma("fdma", "s[28:31]")
    a(f"v_mov_b32 v{vFl}, {FL_F}\nds_write_b32 v{vFl}, v{vOne}")
    stamp(18, vST)
    if hmode not in (1, 2, 4):
        a(f"s_lshl_b32 s46, s21, 4\nv_mov_b32 v{vT1}, s46")
        a(f"{lab('wgo')}:\nglobal_load_dword v{vT2}, v{vT1}, s[16:17] sc1\ns_waitcnt vmcnt(0)\nv_readfirstlane_b32 s50, v{vT2}\ns_cmp_ge_u32 s50, 1\ns_cbranch_scc1 {lab('wgo_ok')}\n{sleep(32)}\ns_branch {lab('wgo')}\n{lab('wgo_ok')}:")
    wait_s(1); s_publish(0); p_fetch(0)
    wait_s(2); wait_s(3); s_publish(1); p_fetch(1)

    OA = 64
    for g in range(4):
        a(f"v_mov_b32 v{vFl}, {FL_O+4*g}")
        ldswait(f"wo{g}", vFl, vT1, "4", (hsleep or 4) if g < 3 else 1)
        for w in range(4): a(f"ds_read_b128 {vr(AA+4*w-16,4)}, v{vOr} offset:{g*4096+w*1024}")
        a("s_waitcnt lgkmcnt(0)")
        B0 = AA - 16
        for i in range(4): a(f"v_add_f32 v{B0+i}, v{B0+i}, v{B0+4+i}\nv_add_f32 v{B0+8+i}, v{B0+8+i}, v{B0+12+i}")
        for i in range(4): a(f"v_add_f32 v{OA+4*g+i}, v{B0+i}, v{B0+8+i}")
        stamp(20 + g, vST)
    if hmode not in (1, 2, 3):
        a(f"s_lshl_b32 s45, s23, 14\ns_add_u32 s45, s45, {O_OFF}\ns_lshl_b32 s46, s22, 10\ns_add_u32 s46, s46, s45")
        for g in range(4):
            a(f"buffer_store_dwordx4 {vr(OA+4*g,4)}, v{vL16}, s[32:35], s46 offen sc1")
            if g < 3: a("s_add_u32 s46, s46, 16384")
        a(f"v_mov_b32 v{vT2}, 1\ns_waitcnt vmcnt(0)")
        one_lane(f"buffer_atomic_add v{vT2}, v{vZ}, s[32:35], s58 offen offset:8 sc0")
        a(f"s_waitcnt vmcnt(0)\nv_readfirstlane_b32 s50, v{vT2}")
        a(f"s_cmp_eq_u32 s50, 15\ns_cbranch_scc0 {lab('notlast')}")
        GA = (32, 96)
        def gather(g):
            b = GA[g & 1]
            for jj in range(16):
                a(f"buffer_load_dwordx4 {vr(b+4*jj,4)}, v{vL16}, s[32:35], s45 offen offset:{(jj%4)*1024} sc1")
                if jj % 4 == 3: a("s_add_u32 s45, s45, 4096")
        def finish(g):
            b = GA[g & 1]
            for st in (8, 4, 2, 1):
                for k in range(st):
                    for i in range(4): a(f"v_add_f32 v{b+4*k+i}, v{b+4*k+i}, v{b+4*(k+st)+i}")
            a(f"v_cvt_pk_bf16_f32 v{24+2*g}, v{b}, v{b+1}\nv_cvt_pk_bf16_f32 v{25+2*g}, v{b+2}, v{b+3}")
        gather(0); gather(1)
        a("s_waitcnt vmcnt(16)"); finish(0); gather(2)
        a("s_waitcnt vmcnt(16)"); finish(1); gather(3)
        a("s_waitcnt vmcnt(16)"); finish(2)
        a("s_waitcnt vmcnt(0)"); finish(3)
        a(f"s_lshl_b32 s45, s23, 9")
        for g in range(4):
            a(f"buffer_store_dwordx2 {vr(24+2*g,2)}, v{vL8}, s[36:39], s45 offen offset:{g*512}")
    a(f"{lab('notlast')}:")
    if dbgtime:
        a(f"s_waitcnt vmcnt(0)\ns_memrealtime s[98:99]\ns_waitcnt lgkmcnt(0)\nv_mov_b32 v{vT1}, s98")
        one_lane(f"global_atomic_umax v{vZ}, v{vT1}, s[16:17] offset:4")
    if stamps:
        a("s_waitcnt vmcnt(0)")
        stamp(24, vST)
        stamp_store(vST, vT1, 1)
    a(f"{lab('done')}:\ns_endpgm")

    head = f"""; Linformer low-rank-projection attention, decode step (B=4 H=16 Sq=1 Skv=8192 Dh=256 R=64), gfx950.
; @launch grid=(256,1,1) block=(384,1,1) lds={LDS_BYTES}
.amdgcn_target "amdgcn-amd-amdhsa--gfx950"
.text
.globl {N}
.p2align 8
.type {N},@function
"""
    tail = f"""
.section .rodata,"a"
.p2align 6
.amdhsa_kernel {N}
  .amdhsa_next_free_vgpr 176
  .amdhsa_next_free_sgpr 102
  .amdhsa_accum_offset 176
  .amdhsa_group_segment_fixed_size 0
  .amdhsa_kernarg_size 64
  .amdhsa_user_sgpr_count 2
  .amdhsa_user_sgpr_kernarg_segment_ptr 1
  .amdhsa_system_sgpr_workgroup_id_x 1
.end_amdhsa_kernel
"""
    return head + a.text() + tail

if __name__ == "__main__":
    out = sys.argv[1]
    kw = eval("dict(%s)" % (sys.argv[2] if len(sys.argv) > 2 else ""))
    open(out, "w").write(gen(**kw))
    import build
    print(build.build(out), "lds", LDS_BYTES)
```

```python
import sys

KNAME = "standalone__low_rank_proj_linformer__decode_kernel"

P_OFF = 0x000000
O_OFF = 0x400000
C_OFF = 0x600000
M_OFF = 0x620000
ST_OFF = 0x700000
WS_SIZE = 0x800000
SENT = 0xFFFFFFFF

RING = 0
STAGE, SROW = 65536, 1040
SS = STAGE + 64 * SROW
PS = SS + 2048
PK = PS + 4096
OP = PK + 1024
FLAGS = OP + 16384
FL_LAND, FL_CONS, FL_S, FL_O, FL_P, FL_E, FL_F, FL_RST = FLAGS, FLAGS + 16, FLAGS + 32, FLAGS + 48, FLAGS + 64, FLAGS + 80, FLAGS + 84, FLAGS + 88
LDS_BYTES = FLAGS + 256

class A:
    def __init__(self): self.l = []
    def __call__(self, s):
        for x in s.split("\n"):
            x = x.strip()
            if x: self.l.append(("" if x.endswith(":") else "  ") + x)
    def text(self): return "\n".join(self.l)

def vr(b, n=1): return f"v{b}" if n == 1 else f"v[{b}:{b+n-1}]"

def gen(W=20, stamps=False, guard=False, dbgtime=False, kflags="nt", vflags="nt", eflags="", dmadepth=8, msleep=16, hprio=0, csleep=1, noef=False, nocons=False, lin=False, nohelp=False, nochk=False, nopub=False, fakecons=False, fakehelp=False, noread=False, nocomp=False, hmode=0, hsleep=None, htest=None, swapkv=False, early=True):
    a = A()
    N = KNAME
    lab = lambda s: f"L_{s}"
    def sleep(n):
        g = f"\ns_add_u32 s97, s97, 1\ns_cmp_gt_u32 s97, 0x40000\ns_cbranch_scc1 {lab('done')}" if guard else ""
        return f"s_sleep {n}" + g
    def srd(base, plo, phi, size):
        a(f"s_mov_b32 s{base}, s{plo}\ns_and_b32 s{base+1}, s{phi}, 0xffff\ns_mov_b32 s{base+2}, {size}\ns_mov_b32 s{base+3}, 0x20000")
    def stamp(idx, vst):
        if stamps:
            a(f"s_memrealtime s[98:99]\ns_waitcnt lgkmcnt(0)\nv_writelane_b32 v{vst}, s98, {idx}")
    def stamp_s(sidx, add, vst):
        if stamps:
            a(f"s_add_u32 s96, {sidx}, {add}\ns_mov_b32 m0, s96\ns_memrealtime s[98:99]\ns_waitcnt lgkmcnt(0)\nv_writelane_b32 v{vst}, s98, m0")
    def stamp_store(vst, vtmp, slot):
        if stamps:
            a(f"s_lshl_b32 s98, s2, 3\ns_add_u32 s98, s98, {slot}\ns_lshl_b32 s98, s98, 8\ns_add_u32 s98, s98, {ST_OFF}")
            a(f"v_mbcnt_lo_u32_b32 v{vtmp}, -1, 0\nv_mbcnt_hi_u32_b32 v{vtmp}, -1, v{vtmp}\nv_lshlrev_b32 v{vtmp}, 2, v{vtmp}")
            a(f"buffer_store_dword v{vst}, v{vtmp}, s[32:35], s98 offen\ns_waitcnt vmcnt(0)")
    def ldswait(tag, vaddr, vtmp, target, slp, cmp="s_cmp_ge_i32"):
        a(f"{lab(tag)}:\nds_read_b32 v{vtmp}, v{vaddr}\ns_waitcnt lgkmcnt(0)\nv_readfirstlane_b32 s50, v{vtmp}\n{cmp} s50, {target}\ns_cbranch_scc1 {lab(tag+'_ok')}\n{sleep(slp)}\ns_branch {lab(tag)}\n{lab(tag+'_ok')}:")
    def one_lane(instr):
        a(f"s_mov_b64 exec, 1\n{instr}\ns_mov_b64 exec, -1")
    COL0 = "s_mov_b32 s46, 0x00010001\ns_mov_b32 s47, 0x00010001\ns_mov_b64 exec, s[46:47]"

    a(f"{N}:")
    a(f"s_cmp_ge_u32 s2, 256\ns_cbranch_scc1 {lab('done')}")
    a("s_load_dwordx16 s[4:19], s[0:1], 0")
    if guard: a("s_mov_b32 s97, 0")
    a("v_lshrrev_b32 v1, 6, v0\nv_and_b32 v2, 63, v0")
    a("s_and_b32 s3, s2, 7\ns_lshr_b32 s24, s2, 3")
    a("v_readfirstlane_b32 s20, v1")
    a("s_and_b32 s21, s24, 15\ns_lshr_b32 s24, s24, 4\ns_lshl_b32 s24, s24, 3\ns_add_u32 s22, s24, s3\ns_lshl_b32 s23, s21, 2")
    a(f"s_cmp_lt_u32 s20, 4\ns_cbranch_scc1 {lab('consumer')}")
    a(f"s_cmp_eq_u32 s20, 5\ns_cbranch_scc1 {lab('helper')}")

    vL16 = 3; vLand = 4; vT = 5; vC = 8; vST = 12
    a(f"v_lshlrev_b32 v{vL16}, 4, v2\nv_mov_b32 v{vLand}, {FL_LAND}\nv_mov_b32 v6, {FL_CONS}")
    a("s_lshl_b32 s40, s23, 22\ns_lshl_b32 s41, s22, 18\ns_add_u32 s40, s40, s41")
    if stamps: a(f"v_mov_b32 v{vST}, 0")
    a("s_waitcnt lgkmcnt(0)")
    srd(24, 6, 7, 0x10000000)
    srd(32, 18, 19, WS_SIZE)
    EARLY = 16 if early else 0
    for p in range(0, EARLY, 4):
        a(f"s_mov_b32 m0, {p*1024}\ns_add_u32 s48, s40, {p*1024}")
        for pp in range(4):
            a(f"buffer_load_dwordx4 v{vL16}, s[24:27], s48 offen offset:{pp*1024} {kflags} lds")
    a("s_barrier")
    stamp(0, vST)
    if stamps: a("s_memtime s[62:63]\ns_waitcnt lgkmcnt(0)")
    a(f"s_mov_b32 s41, 0\ns_mov_b32 s60, 0\nds_read_b128 {vr(vC,4)}, v6")
    if early:
        a("s_mov_b32 s42, s40\ns_mov_b32 s43, 0\ns_mov_b32 s44, 0\ns_mov_b32 s45, -1")
        a(f"s_branch {lab('lkg2')}")
    def loader_loop(tag, flags, uend):
        a(f"{lab(tag)}:")
        a("s_lshr_b32 s42, s41, 3\ns_and_b32 s42, s42, 3\ns_lshl_b32 s42, s42, 22\ns_and_b32 s43, s41, 7\ns_lshl_b32 s43, s43, 15\ns_add_u32 s42, s42, s43\ns_add_u32 s42, s42, s40")
        if lin: a("s_and_b32 s42, s41, 31\ns_lshl_b32 s42, s42, 15\ns_lshl_b32 s43, s2, 20\ns_add_u32 s42, s42, s43")
        a("s_and_b32 s43, s41, 1\ns_lshl_b32 s43, s43, 15\ns_lshl_b32 s44, s41, 5\ns_sub_u32 s45, s41, 1")
        for grp in range(4):
            if grp == 2 and tag == "lk": a(f"{lab('lkg2')}:")
            if nocons and not fakecons or nochk: a(f"s_branch {lab(f'{tag}c{grp}_ok2')}")
            a(f"s_waitcnt lgkmcnt(0)\nv_readfirstlane_b32 s50, v{vC+grp}\ns_cmp_ge_i32 s50, s45\ns_cbranch_scc1 {lab(f'{tag}c{grp}_ok')}")
            a(f"{lab(f'{tag}c{grp}')}:\nds_read_b128 {vr(vC,4)}, v6\ns_waitcnt lgkmcnt(0)\nv_readfirstlane_b32 s50, v{vC+grp}\ns_cmp_ge_i32 s50, s45\ns_cbranch_scc1 {lab(f'{tag}c{grp}_ok')}\ns_add_u32 s60, s60, 1\n{sleep(1)}\ns_branch {lab(f'{tag}c{grp}')}\n{lab(f'{tag}c{grp}_ok')}:")
            a(f"ds_read_b128 {vr(vC,4)}, v6\n{lab(f'{tag}c{grp}_ok2')}:")
            for half in range(2):
                off = grp * 8192 + half * 4096
                a(f"s_add_u32 m0, s43, {off}\ns_add_u32 s48, s42, {off}")
                for pp in range(4):
                    p = grp * 8 + half * 4 + pp
                    a(f"s_waitcnt vmcnt({W-1})")
                    if (p - W + 1) % 8 == 0:
                        a(f"s_add_i32 s51, s44, {p-W+1}\nv_mov_b32 v{vT}, s51")
                        one_lane(f"ds_write_b32 v{vLand}, v{vT}")
                    a(f"buffer_load_dwordx4 v{vL16}, s[24:27], s48 offen offset:{pp*1024} {flags} lds")
        if stamps:
            a(f"s_and_b32 s49, s41, 7\ns_cmp_eq_u32 s49, 7\ns_cbranch_scc0 {lab(tag+'nost')}\ns_lshr_b32 s49, s41, 3")
            stamp_s("s49", 1, vST)
            a(f"{lab(tag+'nost')}:")
        a(f"s_add_u32 s41, s41, 1\ns_cmp_lt_u32 s41, {uend}\ns_cbranch_scc1 {lab(tag)}")
    if swapkv: a("s_mov_b32 s24, s8\ns_and_b32 s25, s9, 0xffff")
    loader_loop("lk", kflags, 32)
    if swapkv: a("s_mov_b32 s24, s6\ns_and_b32 s25, s7, 0xffff")
    else: a("s_mov_b32 s24, s8\ns_and_b32 s25, s9, 0xffff")
    loader_loop("lv", vflags, 64)
    tot = 2048
    for tgt in range(((tot - W + 1) + 7) // 8 * 8, tot + 1, 8):
        a(f"s_waitcnt vmcnt({tot - tgt})\nv_mov_b32 v{vT}, {tgt}")
        one_lane(f"ds_write_b32 v{vLand}, v{vT}")
    a("s_waitcnt lgkmcnt(0)")
    stamp(9, vST)
    if stamps: a(f"s_memtime s[64:65]\ns_waitcnt lgkmcnt(0)\ns_sub_u32 s64, s64, s62\nv_writelane_b32 v{vST}, s64, 29")
    if stamps: a(f"s_getreg_b32 s49, hwreg(HW_REG_XCC_ID)\nv_writelane_b32 v{vST}, s49, 30\nv_writelane_b32 v{vST}, s60, 31")
    stamp_store(vST, vT, 2)
    a(f"s_branch {lab('done')}")

    a(f"{lab('consumer')}:")
    R = 4; Qr = 36; EF = 52; ACC = 116; X = 132; TMP = 140; BB = 148; W4 = 156
    vRdK = 160; vRdV = 161; vSa = 162; vBa = 163; vPsa = 164; vWs = 165; vOa = 166; vLand = 167; vCons = 168; vT = 169; vA = 170
    vOne = 171; vFl = 172; vST = 173; vG16 = 174; vWs0 = 175; vT2 = 3
    Aa = X; DD = ACC
    a(f"v_and_b32 v{vT}, 31, v2\nv_lshlrev_b32 v{vT}, 4, v{vT}\ns_lshl_b32 s41, s23, 9")
    a("s_waitcnt lgkmcnt(0)")
    srd(36, 4, 5, 32768)
    for g in range(4):
        a(f"buffer_load_dwordx4 {vr(Qr+4*g,4)}, v{vT}, s[36:39], s41 offen offset:{g*512}")
    srd(32, 18, 19, WS_SIZE)
    a(f"s_lshl_b32 s40, s20, 13")
    a(f"v_lshlrev_b32 v{vRdK}, 4, v2\nv_add_u32 v{vRdK}, s40, v{vRdK}")
    a(f"v_lshrrev_b32 v{vG16}, 4, v2\nv_lshlrev_b32 v{vRdV}, 11, v{vG16}\nv_and_b32 v{vT}, 15, v2\nv_lshlrev_b32 v{vT}, 4, v{vT}\nv_add_u32 v{vRdV}, v{vRdV}, v{vT}\nv_add_u32 v{vRdV}, s40, v{vRdV}")
    a(f"v_lshlrev_b32 v{vG16}, 4, v{vG16}")
    a(f"s_lshl_b32 s42, s20, 9\ns_add_u32 s42, s42, {SS}")
    a(f"v_and_b32 v{vSa}, 16, v2\nv_lshrrev_b32 v{vSa}, 2, v{vSa}\nv_and_b32 v{vT}, 8, v2\nv_add_u32 v{vSa}, v{vSa}, v{vT}")
    a(f"v_and_b32 v{vT}, 4, v2\nv_lshlrev_b32 v{vT}, 2, v{vT}\nv_add_u32 v{vSa}, v{vSa}, v{vT}")
    a(f"v_lshrrev_b32 v{vT}, 5, v2\nv_lshlrev_b32 v{vT}, 1, v{vT}\nv_add_u32 v{vSa}, v{vSa}, v{vT}\nv_add_u32 v{vSa}, s42, v{vSa}")
    a(f"v_and_b32 v{vT}, 1, v2\nv_lshlrev_b32 v{vBa}, 8, v{vT}\nv_add_u32 v{vBa}, v{vBa}, v{vG16}\nv_add_u32 v{vBa}, s42, v{vBa}")
    a(f"v_add_u32 v{vWs0}, s42, v{vG16}")
    a(f"s_lshl_b32 s43, s20, 8\ns_add_u32 s43, s43, {PS}\nv_add_u32 v{vPsa}, s43, v{vG16}")
    a(f"v_lshrrev_b32 v{vOa}, 5, v2\nv_lshlrev_b32 v{vOa}, 9, v{vOa}\nv_and_b32 v{vT}, 15, v2\nv_lshlrev_b32 v{vT}, 5, v{vT}\nv_add_u32 v{vOa}, v{vOa}, v{vT}")
    a(f"v_and_b32 v{vT}, 16, v2\nv_lshrrev_b32 v{vT}, 2, v{vT}\nv_add_u32 v{vOa}, v{vOa}, v{vT}\ns_lshl_b32 s43, s20, 10\ns_add_u32 s43, s43, {OP}\nv_add_u32 v{vOa}, s43, v{vOa}")
    a(f"v_mov_b32 v{vLand}, {FL_LAND}\ns_lshl_b32 s43, s20, 2\ns_add_u32 s43, s43, {FL_CONS}\nv_mov_b32 v{vCons}, s43\nv_mov_b32 v{vOne}, 1")
    a("s_mov_b32 s55, 0xffff0000")
    if stamps: a(f"v_mov_b32 v{vST}, 0")
    a("s_barrier")
    if nocons: a(f"s_branch {lab('done')}")
    stamp(0, vST)
    a("s_waitcnt vmcnt(0)")
    a("s_mov_b32 s41, 0\ns_lshl_b32 s44, s20, 3\ns_add_u32 s44, s44, 8")

    def unit_head(tag, vbase):
        ldswait(tag, vLand, vT, "s44", csleep)
        a(f"s_and_b32 s45, s41, 1\ns_lshl_b32 s45, s45, 15\nv_add_u32 v{vA}, s45, v{vbase}")
    def signal_consumed():
        a(f"s_add_u32 s45, s41, 1\nv_mov_b32 v{vT}, s45")
        one_lane(f"ds_write_b32 v{vCons}, v{vT}")

    a(f"{lab('kunit')}:")
    unit_head("kw", vRdK)
    for t in range(8 if not noread else 0): a(f"ds_read_b128 {vr(R+4*t,4)}, v{vA} offset:{t*1024}")
    for t in range(8):
        a(f"s_waitcnt lgkmcnt({7-t})")
        if t == 7: signal_consumed()
        if noread or nocomp: continue
        r = R + 4 * t
        a(f"v_dot2_f32_bf16 v{Aa+t}, v{r}, v{Qr}, 0")
        for i in range(1, 4): a(f"v_dot2_f32_bf16 v{Aa+t}, v{r+i}, v{Qr+i}, v{Aa+t}")
    a("s_nop 0")
    for p in range(4): a(f"v_permlane16_swap_b32 v{Aa+2*p}, v{Aa+2*p+1}")
    for p in range(4): a(f"v_add_f32 v{TMP+p}, v{Aa+2*p}, v{Aa+2*p+1}")
    c0, c1, d = TMP + 4, TMP + 5, TMP + 6
    a(f"v_add_f32_dpp v{c0}, v{TMP}, v{TMP} row_ror:8 row_mask:0xf bank_mask:0x3")
    a(f"v_add_f32_dpp v{c0}, v{TMP+1}, v{TMP+1} row_ror:8 row_mask:0xf bank_mask:0xc")
    a(f"v_add_f32_dpp v{c1}, v{TMP+2}, v{TMP+2} row_ror:8 row_mask:0xf bank_mask:0x3")
    a(f"v_add_f32_dpp v{c1}, v{TMP+3}, v{TMP+3} row_ror:8 row_mask:0xf bank_mask:0xc")
    a("s_nop 0")
    a(f"v_add_f32_dpp v{d}, v{c0}, v{c0} row_half_mirror row_mask:0xf bank_mask:0x5")
    a(f"v_add_f32_dpp v{d}, v{c1}, v{c1} row_half_mirror row_mask:0xf bank_mask:0xa")
    a("s_nop 1")
    a(f"v_add_f32_dpp v{d}, v{d}, v{d} quad_perm:[1,0,3,2] row_mask:0xf bank_mask:0xf")
    a("s_nop 1")
    a(f"v_add_f32_dpp v{d}, v{d}, v{d} quad_perm:[2,3,0,1] row_mask:0xf bank_mask:0xf")
    a(f"v_cvt_pk_bf16_f32 v{c0}, v{d}, v{d}")
    a(f"s_and_b32 s45, s41, 7\ns_lshl_b32 s46, s45, 5\nv_add_u32 v{vT}, s46, v{vSa}")
    a(f"v_lshlrev_b32 v{c1}, 16, v{c0}")
    a(f"ds_write_b16 v{vT}, v{c0}")
    a(f"v_sub_f32 v{c1}, v{d}, v{c1}")
    a(f"v_cvt_pk_bf16_f32 v{TMP}, v{c1}, v{c1}")
    a(f"ds_write_b16 v{vT}, v{TMP} offset:256")
    a(f"s_cmp_eq_u32 s45, 7\ns_cbranch_scc0 {lab('knoend')}")
    a(f"s_cmp_eq_u32 s41, 7\ns_cbranch_scc0 {lab('noE')}")
    a(f"v_mov_b32 v{vFl}, {FL_E}")
    ldswait("wE", vFl, vT, "1", 2)
    a(f"v_and_b32 v{vT}, 15, v2\nv_mul_u32_u24 v{vA}, {SROW}, v{vT}\nv_lshrrev_b32 v{vT}, 5, v2\nv_lshlrev_b32 v{vT}, 7, v{vT}\nv_add_u32 v{vA}, v{vA}, v{vT}")
    a(f"v_and_b32 v{vT}, 16, v2\nv_add_u32 v{vA}, v{vA}, v{vT}\ns_lshl_b32 s45, s20, 5\ns_add_u32 s45, s45, {STAGE}\nv_add_u32 v{vA}, s45, v{vA}")
    for tl in range(4):
        for ks in range(4):
            a(f"ds_read_b128 {vr(EF+16*tl+4*ks,4)}, v{vA} offset:{tl*16*SROW+ks*256}")
        a("s_waitcnt lgkmcnt(4)")
    a(f"{lab('noE')}:")
    a("s_waitcnt lgkmcnt(0)")
    for ks in range(4): a(f"ds_read_b128 {vr(R+4*ks,4)}, v{vBa} offset:{ks*64}")
    for ks in range(4):
        a(f"s_waitcnt lgkmcnt({3-ks})")
        for tl in range(4):
            c = "0" if ks == 0 else vr(DD+4*tl, 4)
            a(f"v_mfma_f32_16x16x32_bf16 {vr(DD+4*tl,4)}, {vr(EF+16*tl+4*ks,4)}, {vr(R+4*ks,4)}, {c}")
    a(f"s_lshr_b32 s45, s41, 3\ns_lshl_b32 s48, s45, 10\nv_add_u32 v{vA}, s48, v{vPsa}\ns_lshl_b32 s48, s45, 2\ns_add_u32 s48, s48, {FL_S}\nv_mov_b32 v{vFl}, s48")
    a("s_nop 4")
    for i in range(16):
        a(f"v_add_f32_dpp v{DD+i}, v{DD+i}, v{DD+i} quad_perm:[1,0,3,2] row_mask:0xf bank_mask:0xf")
    a(COL0)
    for tl in range(4): a(f"ds_write_b128 v{vA}, {vr(DD+4*tl,4)} offset:{tl*64}")
    a("s_mov_b64 exec, -1\ns_waitcnt lgkmcnt(0)")
    one_lane(f"ds_add_u32 v{vFl}, v{vOne}")
    for i in range(12): a(f"v_mov_b32 v{Qr+i}, v{Qr+4+i}")
    stamp_s("s45", 1, vST)
    a(f"{lab('knoend')}:")
    a(f"s_add_u32 s41, s41, 1\ns_add_u32 s44, s44, 32\ns_cmp_lt_u32 s41, 32\ns_cbranch_scc1 {lab('kunit')}")

    a(f"v_mov_b32 v{vFl}, {FL_F}")
    ldswait("wF", vFl, vT, "1", 2)
    a(f"v_and_b32 v{vT}, 15, v2\nv_lshrrev_b32 v{vT}, 2, v{vT}\nv_lshrrev_b32 v{vA}, 4, v2\nv_lshl_add_u32 v{vA}, v{vA}, 3, v{vT}\nv_mul_u32_u24 v{vA}, {SROW}, v{vA}")
    a(f"v_and_b32 v{vT}, 3, v2\nv_lshlrev_b32 v{vT}, 3, v{vT}\nv_add_u32 v{vA}, v{vA}, v{vT}\ns_lshl_b32 s45, s20, 5\ns_add_u32 s45, s45, {STAGE}\nv_add_u32 v{vA}, s45, v{vA}")
    n = 0
    for uu in range(8):
        for ks in range(2):
            for hf in range(2):
                a(f"ds_read_b64_tr_b16 {vr(EF+(uu*2+ks)*4+2*hf,2)}, v{vA} offset:{(32*ks+4*hf)*SROW+uu*128}")
                n += 1
                if n % 8 == 0: a("s_waitcnt lgkmcnt(4)")
    a("s_waitcnt lgkmcnt(0)")
    for i in range(16): a(f"v_mov_b32 v{ACC+i}, 0")
    stamp(5, vST)

    a(f"{lab('vhead')}:")
    a(f"s_lshr_b32 s45, s41, 3\ns_and_b32 s45, s45, 3\ns_lshl_b32 s48, s45, 2\ns_add_u32 s48, s48, {FL_P}\nv_mov_b32 v{vFl}, s48")
    ldswait("wP", vFl, vT, "1", 2)
    a(f"s_lshl_b32 s48, s45, 8\ns_add_u32 s48, s48, {PK}\nv_and_b32 v{vT}, 1, v2\nv_lshlrev_b32 v{vT}, 7, v{vT}\nv_add_u32 v{vT}, v{vT}, v{vG16}\nv_add_u32 v{vT}, s48, v{vT}")
    a(f"ds_read_b128 {vr(BB,4)}, v{vT}\nds_read_b128 {vr(BB+4,4)}, v{vT} offset:64\ns_waitcnt lgkmcnt(0)")
    for uu in range(8):
        a(f"v_mfma_f32_16x16x32_bf16 {vr(R+4*uu,4)}, {vr(EF+uu*8,4)}, {vr(BB,4)}, 0")
    for uu in range(8):
        a(f"v_mfma_f32_16x16x32_bf16 {vr(R+4*uu,4)}, {vr(EF+uu*8+4,4)}, {vr(BB+4,4)}, {vr(R+4*uu,4)}")
    a("s_nop 7")
    for i in range(32):
        a(f"v_add_f32_dpp v{R+i}, v{R+i}, v{R+i} quad_perm:[1,0,3,2] row_mask:0xf bank_mask:0xf")
    a(COL0)
    for uu in range(8): a(f"ds_write_b128 v{vWs0}, {vr(R+4*uu,4)} offset:{uu*64}")
    a(f"s_mov_b64 exec, -1\nv_mov_b32 v{vWs}, v{vWs0}\ns_waitcnt lgkmcnt(0)")
    a(f"{lab('vunit')}:")
    unit_head("vw", vRdV)
    a(f"ds_read_b128 {vr(W4,4)}, v{vWs}")
    for i in range(4 if not noread else 0):
        for hf in range(2):
            a(f"ds_read_b128 {vr(R+4*(2*i+hf),4)}, v{vA} offset:{i*512+hf*256}")
    for k in range(8):
        i, hf = k >> 1, k & 1
        a(f"s_waitcnt lgkmcnt({7-k})")
        if k == 7: signal_consumed()
        if noread or nocomp: continue
        r = R + 4 * k
        for e in range(4):
            a(f"v_lshlrev_b32 v{X+2*e}, 16, v{r+e}\nv_and_b32 v{X+2*e+1}, s55, v{r+e}")
        wp = W4 + (i & ~1)
        sel = "op_sel_hi:[1,0,1]" if i % 2 == 0 else "op_sel:[0,1,0] op_sel_hi:[1,1,1]"
        for e in range(4):
            ac = ACC + 8 * hf + 2 * e
            a(f"v_pk_fma_f32 {vr(ac,2)}, {vr(X+2*e,2)}, {vr(wp,2)}, {vr(ac,2)} {sel}")
    a(f"v_add_u32 v{vWs}, 64, v{vWs}")
    a(f"s_and_b32 s45, s41, 7\ns_add_u32 s41, s41, 1\ns_add_u32 s44, s44, 32\ns_cmp_eq_u32 s45, 7\ns_cbranch_scc0 {lab('vunit')}")
    a("s_sub_u32 s45, s41, 33\ns_lshr_b32 s45, s45, 3")
    for e in range(8): a(f"v_permlane32_swap_b32 v{ACC+e}, v{ACC+8+e}")
    for e in range(8): a(f"v_add_f32 v{X+e}, v{ACC+e}, v{ACC+8+e}")
    a(f"s_lshl_b32 s48, s45, 12\nv_add_u32 v{vA}, s48, v{vOa}\ns_lshl_b32 s48, s45, 2\ns_add_u32 s48, s48, {FL_O}\nv_mov_b32 v{vFl}, s48")
    for q in range(4): a(f"v_permlane16_swap_b32 v{X+2*q}, v{X+2*q+1}")
    for q in range(4): a(f"v_add_f32 v{TMP+q}, v{X+2*q}, v{X+2*q+1}")
    for q in range(4): a(f"ds_write_b32 v{vA}, v{TMP+q} offset:{8*q}")
    for i in range(16): a(f"v_mov_b32 v{ACC+i}, 0")
    a("s_waitcnt lgkmcnt(0)")
    one_lane(f"ds_add_u32 v{vFl}, v{vOne}")
    stamp_s("s45", 6, vST)
    a(f"s_cmp_lt_u32 s41, 64\ns_cbranch_scc1 {lab('vhead')}")
    srd(36, 14, 15, 32768)
    a(f"s_lshl_b32 s45, s20, 2\ns_add_u32 s45, s45, {FL_O}\nv_mov_b32 v{vFl}, s45")
    a(f"v_lshlrev_b32 v{vA}, 4, v2\ns_lshl_b32 s45, s20, 12\ns_add_u32 s45, s45, {OP}\nv_add_u32 v{vT2}, s45, v{vA}")
    a("s_add_u32 s44, s23, s20")
    a(f"s_lshl_b32 s45, s44, 14\ns_add_u32 s45, s45, {O_OFF}\ns_lshl_b32 s46, s22, 10\ns_add_u32 s46, s46, s45")
    a(f"s_lshl_b32 s47, s21, 8\ns_lshl_b32 s48, s20, 2\ns_add_u32 s47, s47, s48\ns_add_u32 s47, s47, {C_OFF + 16}")
    ldswait("wof", vFl, vT, "4", 1)
    for w in range(4): a(f"ds_read_b128 {vr(R+4*w,4)}, v{vT2} offset:{w*1024}")
    a(f"v_mov_b32 v{vT}, 0\nv_mov_b32 v{vFl}, 1")
    a("s_waitcnt lgkmcnt(0)")
    for i in range(4): a(f"v_add_f32 v{R+i}, v{R+i}, v{R+4+i}\nv_add_f32 v{R+8+i}, v{R+8+i}, v{R+12+i}")
    for i in range(4): a(f"v_add_f32 v{R+i}, v{R+i}, v{R+8+i}")
    a(f"buffer_store_dwordx4 {vr(R,4)}, v{vA}, s[32:35], s46 offen sc1\ns_waitcnt vmcnt(0)")
    one_lane(f"buffer_atomic_add v{vFl}, v{vT}, s[32:35], s47 offen sc0")
    a(f"s_waitcnt vmcnt(0)\nv_readfirstlane_b32 s50, v{vFl}")
    stamp(10, vST)
    a(f"s_cmp_eq_u32 s50, 15\ns_cbranch_scc0 {lab('cend')}")
    GB = 4
    for jj in range(16):
        a(f"buffer_load_dwordx4 {vr(GB+4*jj,4)}, v{vA}, s[32:35], s45 offen offset:{(jj%4)*1024} sc1")
        if jj % 4 == 3 and jj < 15: a("s_add_u32 s45, s45, 4096")
    a(f"v_lshlrev_b32 v{vT}, 3, v2\ns_lshl_b32 s45, s44, 9\ns_waitcnt vmcnt(0)")
    for st in (8, 4, 2, 1):
        for k in range(st):
            for i in range(4): a(f"v_add_f32 v{GB+4*k+i}, v{GB+4*k+i}, v{GB+4*(k+st)+i}")
    a(f"v_cvt_pk_bf16_f32 v{GB+4}, v{GB}, v{GB+1}\nv_cvt_pk_bf16_f32 v{GB+5}, v{GB+2}, v{GB+3}")
    a(f"buffer_store_dwordx2 {vr(GB+4,2)}, v{vT}, s[36:39], s45 offen")
    a(f"{lab('cend')}:")
    if dbgtime:
        a(f"s_waitcnt vmcnt(0)\ns_memrealtime s[98:99]\ns_waitcnt lgkmcnt(0)\nv_mov_b32 v{vT}, s98\nv_mov_b32 v{vFl}, 0")
        one_lane(f"global_atomic_umax v{vFl}, v{vT}, s[16:17] offset:4")
    if stamps:
        a("s_waitcnt vmcnt(0)")
        stamp(11, vST)
        a(f"s_cmp_eq_u32 s20, 3\ns_cbranch_scc0 {lab('done')}")
        stamp_store(vST, vT, 0)
    a(f"s_branch {lab('done')}")

    a(f"{lab('helper')}:")
    if hprio: a(f"s_setprio {hprio}")
    vL16 = 3; vZ = 4; vOne = 5; vL4 = 10; vP = 13; vT1 = 14; vT2 = 15; vFl = 18; vST = 19; vOr = 20; vPsr = 21; vMo = 22
    AA = 48
    a(f"v_lshlrev_b32 v{vL4}, 2, v2\nv_mov_b32 v{vZ}, 0\nv_add_u32 v{vT1}, {FLAGS}, v{vL4}\nds_write_b32 v{vT1}, v{vZ}")
    a(f"v_lshlrev_b32 v{vL16}, 4, v2\nv_mov_b32 v{vOne}, 1")
    if dbgtime: a("s_memrealtime s[98:99]")
    a("s_waitcnt lgkmcnt(0)\ns_barrier")
    if fakehelp:
        a(f"v_mov_b32 v{vT1}, {FL_P}\nv_mov_b32 v24, 1\nv_mov_b32 v25, 1\nv_mov_b32 v26, 1\nv_mov_b32 v27, 1\nds_write_b128 v{vT1}, v[24:27]\nds_write_b128 v{vT1}, v[24:27] offset:16\ns_waitcnt lgkmcnt(0)\ns_branch {lab('done')}")
    if fakecons: a(f"v_mov_b32 v{vT1}, {FL_CONS}\nv_mov_b32 v24, 1000\nv_mov_b32 v25, 1000\nv_mov_b32 v26, 1000\nv_mov_b32 v27, 1000\nds_write_b128 v{vT1}, v[24:27]\ns_waitcnt lgkmcnt(0)")
    if htest:
        srd(32, 18, 19, WS_SIZE)
        a(f"v_mov_b32 v{vFl}, {FL_LAND}\ns_mov_b32 s42, 200\ns_lshl_b32 s46, s2, 10\ns_add_u32 s46, s46, {O_OFF}\ns_lshr_b32 s47, s2, 2\ns_lshl_b32 s47, s47, 8\ns_add_u32 s47, s47, {C_OFF}")
        a(f"s_lshr_b32 s45, s2, 4\ns_lshl_b32 s45, s45, 14\ns_add_u32 s45, s45, {O_OFF}")
        a(f"{lab('ht')}:")
        ldswait("htw", vFl, vT1, "s42", 16)
        for op in htest.split("+"):
            if op == "st1k": a(f"buffer_store_dwordx4 {vr(AA,4)}, v{vL16}, s[32:35], s46 offen sc1\ns_waitcnt vmcnt(0)")
            if op == "st1kp": a(f"buffer_store_dwordx4 {vr(AA,4)}, v{vL16}, s[32:35], s46 offen\ns_waitcnt vmcnt(0)")
            if op == "st1knt": a(f"buffer_store_dwordx4 {vr(AA,4)}, v{vL16}, s[32:35], s46 offen sc1 nt\ns_waitcnt vmcnt(0)")
            if op == "st256": a(f"buffer_store_dword v{AA}, v{vL4}, s[32:35], s46 offen sc1\ns_waitcnt vmcnt(0)")
            if op == "at":
                one_lane(f"buffer_atomic_add v{vOne}, v{vZ}, s[32:35], s47 offen offset:8 sc0")
                a(f"s_waitcnt vmcnt(0)\nv_mov_b32 v{vOne}, 1")
            if op == "ld16":
                for jj in range(16):
                    a(f"buffer_load_dwordx4 {vr(AA+4*jj,4)}, v{vL16}, s[32:35], s45 offen offset:{(jj%4)*1024} sc1")
                a("s_waitcnt vmcnt(0)")
            if op == "ld1": a(f"buffer_load_dword v{AA+8}, v{vL4}, s[32:35], s46 offen sc1\ns_waitcnt vmcnt(0)")
            if op == "st16x256":
                for m in range(16): a(f"buffer_store_dword v{AA}, v{vL4}, s[32:35], s45 offen offset:{m*256} sc1")
        a(f"s_add_u32 s42, s42, 256\ns_cmp_lt_u32 s42, 2048\ns_cbranch_scc1 {lab('ht')}\ns_branch {lab('done')}")
    if nocons or nohelp: a(f"s_branch {lab('done')}")
    if dbgtime:
        a(f"s_not_b32 s98, s98\nv_mov_b32 v{vT1}, s98")
        one_lane(f"global_atomic_umax v{vZ}, v{vT1}, s[16:17] offset:8")
    srd(24, 10, 11, 0x100000)
    srd(28, 12, 13, 0x100000)
    srd(32, 18, 19, WS_SIZE)
    srd(36, 14, 15, 32768)
    if stamps: a(f"v_mov_b32 v{vST}, 0")
    stamp(0, vST)
    def dma(tag, srdname):
        if noef or hmode == 2:
            a("s_waitcnt vmcnt(0)")
            return
        a(f"s_mov_b32 s40, {STAGE}\ns_lshl_b32 s41, s22, 10\ns_mov_b32 s43, 64\n{lab(tag)}:")
        a(f"s_mov_b32 m0, s40\ns_add_u32 s40, s40, {SROW}\nbuffer_load_dwordx4 v{vL16}, {srdname}, s41 offen {eflags} lds")
        a(f"s_add_u32 s41, s41, 16384\ns_waitcnt vmcnt({dmadepth-1})\ns_sub_u32 s43, s43, 1\ns_cmp_lg_u32 s43, 0\ns_cbranch_scc1 {lab(tag)}")
        a("s_waitcnt vmcnt(0)")
    a(f"s_lshl_b32 s58, s21, 8\ns_add_u32 s58, s58, {C_OFF}")
    a(f"s_lshl_b32 s59, s23, 8\ns_add_u32 s59, s59, {M_OFF}")
    a(f"s_cmp_lg_u32 s22, 0\ns_cbranch_scc1 {lab('noreset')}")
    for i in range(4): a(f"v_mov_b32 v{AA+i}, 0\nv_mov_b32 v{AA+4+i}, -1")
    a(f"s_mov_b64 exec, 3\nbuffer_store_dwordx4 {vr(AA,4)}, v{vL16}, s[32:35], s58 offen sc1\ns_mov_b64 exec, -1")
    a(f"buffer_store_dwordx4 {vr(AA+4,4)}, v{vL16}, s[32:35], s59 offen sc1")
    a(f"s_lshl_b32 s46, s21, 4\nv_mov_b32 v{vT1}, s46\ns_waitcnt vmcnt(0)")
    one_lane(f"global_store_dword v{vT1}, v{vOne}, s[16:17] sc1")
    a(f"{lab('noreset')}:")
    dma("edma", "s[24:27]")
    a(f"v_mov_b32 v{vFl}, {FL_E}\nds_write_b32 v{vFl}, v{vOne}")
    stamp(1, vST)
    vSr = 21; vL8 = 23
    a(f"v_add_u32 v{vOr}, {OP}, v{vL16}\nv_lshlrev_b32 v{vL8}, 3, v2")
    a(f"v_lshrrev_b32 v{vSr}, 4, v2\nv_and_b32 v{vSr}, 1, v{vSr}\nv_lshlrev_b32 v{vSr}, 10, v{vSr}\nv_and_b32 v{vT1}, 15, v2\nv_lshlrev_b32 v{vT1}, 4, v{vT1}\nv_add_u32 v{vSr}, v{vSr}, v{vT1}\nv_add_u32 v{vSr}, {PS}, v{vSr}")
    a(f"v_and_b32 v{vMo}, 1, v2\nv_lshlrev_b32 v{vMo}, 7, v{vMo}\nv_lshrrev_b32 v{vT1}, 1, v2\nv_lshlrev_b32 v{vT1}, 2, v{vT1}\nv_add_u32 v{vMo}, v{vMo}, v{vT1}")

    def wave_reduce(op, v, t1, t2):
        for ror in (8, 4, 2, 1):
            a(f"s_nop 1\n{op}_dpp v{v}, v{v}, v{v} row_ror:{ror} row_mask:0xf bank_mask:0xf")
        a(f"v_mov_b32 v{t1}, v{v}\nv_mov_b32 v{t2}, v{v}\ns_nop 1\nv_permlane16_swap_b32 v{t1}, v{t2}\n{op} v{v}, v{t1}, v{t2}")
        a(f"s_nop 0\nv_mov_b32 v{t1}, v{v}\nv_mov_b32 v{t2}, v{v}\ns_nop 1\nv_permlane32_swap_b32 v{t1}, v{t2}\n{op} v{v}, v{t1}, v{t2}")
    def wait_s(g):
        a(f"v_mov_b32 v{vFl}, {FL_S+4*g}")
        ldswait(f"s{g}w", vFl, vT1, "4", hsleep or 4)
    def s_publish(rd):
        t = f"r{rd}"
        if hmode in (1, 2, 4): return
        for w in range(4): a(f"ds_read_b128 {vr(AA+4*w,4)}, v{vSr} offset:{rd*2048+w*256}")
        a(f"s_lshl_b32 s45, s21, 1\ns_add_u32 s45, s45, {rd}\ns_lshl_b32 s45, s45, 13\ns_add_u32 s45, s45, {P_OFF}\ns_lshl_b32 s46, s22, 9\ns_add_u32 s46, s46, s45")
        a("s_waitcnt lgkmcnt(0)")
        for i in range(4): a(f"v_add_f32 v{AA+i}, v{AA+i}, v{AA+4+i}\nv_add_f32 v{AA+8+i}, v{AA+8+i}, v{AA+12+i}")
        for i in range(4): a(f"v_add_f32 v{AA+i}, v{AA+i}, v{AA+8+i}")
        a(f"s_mov_b32 exec_hi, 0\nbuffer_store_dwordx4 {vr(AA,4)}, v{vL16}, s[32:35], s46 offen sc1\ns_mov_b64 exec, -1")
        a(f"v_mov_b32 v{vT2}, 1")
        a("s_waitcnt vmcnt(0)")
        one_lane(f"buffer_atomic_add v{vT2}, v{vZ}, s[32:35], s58 offen offset:{4*rd} sc0")
        stamp(2 + 4 * rd, vST)
        a(f"s_waitcnt vmcnt(0)\nv_readfirstlane_b32 s50, v{vT2}")
        a(f"s_cmp_eq_u32 s50, 15\ns_cbranch_scc0 {lab(t+'_nl')}")
        for jj in range(16):
            if jj % 8 == 0 and jj: a("s_add_u32 s45, s45, 4096")
            for h in range(2):
                a(f"buffer_load_dword v{AA+16*h+jj}, v{vL4}, s[32:35], s45 offen offset:{(jj%8)*512+h*256} sc1")
        a("s_waitcnt vmcnt(0)")
        for h in range(2):
            B0 = AA + 16 * h
            T = AA + 40
            for st in (8, 4, 2, 1):
                for i in range(st): a(f"v_add_f32 v{B0+i}, v{B0+i}, v{B0+i+st}")
            a(f"v_mul_f32 v{vP}, 0x3db8aa3b, v{B0}")
            a(f"v_mov_b32 v{T+1}, v{vP}")
            wave_reduce("v_max_f32", T + 1, T + 2, T + 3)
            a(f"v_sub_f32 v{vP}, v{vP}, v{T+1}\nv_exp_f32 v{vP}, v{vP}\ns_nop 0\nv_mov_b32 v{T+1}, v{vP}")
            wave_reduce("v_add_f32", T + 1, T + 2, T + 3)
            a(f"v_rcp_f32 v{T+1}, v{T+1}\ns_nop 0\nv_mul_f32 v{vP}, v{vP}, v{T+1}")
            a(f"v_cvt_pk_bf16_f32 v{T}, v{vP}, v{vP}\nv_lshlrev_b32 v{T}, 16, v{T}\nv_sub_f32 v{T+1}, v{vP}, v{T}\ns_nop 1")
            a(f"v_mov_b32_dpp v{T+2}, v{vP} quad_perm:[1,0,3,2] row_mask:0xf bank_mask:0xf")
            a(f"v_mov_b32_dpp v{T+3}, v{T+1} quad_perm:[1,0,3,2] row_mask:0xf bank_mask:0xf")
            a(f"v_cvt_pk_bf16_f32 v{T+4}, v{vP}, v{T+2}\nv_cvt_pk_bf16_f32 v{T+5}, v{T+3}, v{T+1}")
            a(f"v_and_b32 v{T+6}, 1, v2\nv_cmp_eq_u32 vcc, 1, v{T+6}\ns_nop 1\nv_cndmask_b32 v{T+4}, v{T+4}, v{T+5}, vcc")
            a(f"v_mov_b32 v{T+5}, 0x7fc07fc0\nv_cmp_eq_u32 vcc, -1, v{T+4}\ns_nop 1\nv_cndmask_b32 v{T+8+h}, v{T+4}, v{T+5}, vcc")
        for h in range(2):
            a(f"buffer_store_dword v{AA+48+h}, v{vMo}, s[32:35], s59 offen offset:{(2*rd+h)*256} sc1")
        a(f"{lab(t+'_nl')}:")
        stamp(3 + 4 * rd, vST)
    def p_fetch(rd):
        t = f"p{rd}"
        if hmode in (1, 2, 4):
            a(f"v_mov_b32 v{vFl}, {FL_P+8*rd}\nds_write_b32 v{vFl}, v{vOne}\nds_write_b32 v{vFl}, v{vOne} offset:4")
            return
        a(f"{lab(t)}:\nbuffer_load_dwordx2 {vr(AA,2)}, v{vL8}, s[32:35], s59 offen offset:{rd*512} sc1\ns_waitcnt vmcnt(0)\nv_cmp_eq_u32 vcc, -1, v{AA}\nv_cmp_eq_u32 s[46:47], -1, v{AA+1}\ns_nop 1\ns_or_b64 vcc, vcc, s[46:47]\ns_cmp_eq_u64 vcc, 0\ns_cbranch_scc1 {lab(t+'_ok')}\n{sleep(msleep)}\ns_branch {lab(t)}\n{lab(t+'_ok')}:")
        a(f"v_add_u32 v{vT1}, {PK+rd*512}, v{vL8}\nds_write_b64 v{vT1}, {vr(AA,2)}\nv_mov_b32 v{vFl}, {FL_P+8*rd}\ns_waitcnt lgkmcnt(0)\nds_write_b32 v{vFl}, v{vOne}\nds_write_b32 v{vFl}, v{vOne} offset:4")
        stamp(4 + 4 * rd, vST)

    wait_s(0)
    dma("fdma", "s[28:31]")
    a(f"v_mov_b32 v{vFl}, {FL_F}\nds_write_b32 v{vFl}, v{vOne}")
    stamp(18, vST)
    if hmode not in (1, 2, 4):
        a(f"s_lshl_b32 s46, s21, 4\nv_mov_b32 v{vT1}, s46")
        a(f"{lab('wgo')}:\nglobal_load_dword v{vT2}, v{vT1}, s[16:17] sc1\ns_waitcnt vmcnt(0)\nv_readfirstlane_b32 s50, v{vT2}\ns_cmp_ge_u32 s50, 1\ns_cbranch_scc1 {lab('wgo_ok')}\n{sleep(32)}\ns_branch {lab('wgo')}\n{lab('wgo_ok')}:")
    wait_s(1); s_publish(0)
    wait_s(2); p_fetch(0)
    wait_s(3); s_publish(1)
    a(f"v_mov_b32 v{vFl}, {FL_O}")
    ldswait("wo0", vFl, vT1, "4", hsleep or 8)
    p_fetch(1)
    if stamps:
        a("s_waitcnt vmcnt(0)")
        stamp(24, vST)
        stamp_store(vST, vT1, 1)
    a(f"{lab('done')}:\ns_endpgm")

    head = f"""; Linformer low-rank-projection attention, decode step (B=4 H=16 Sq=1 Skv=8192 Dh=256 R=64), gfx950.
; @launch grid=(256,1,1) block=(384,1,1) lds={LDS_BYTES}
.amdgcn_target "amdgcn-amd-amdhsa--gfx950"
.text
.globl {N}
.p2align 8
.type {N},@function
"""
    tail = f"""
.section .rodata,"a"
.p2align 6
.amdhsa_kernel {N}
  .amdhsa_next_free_vgpr 176
  .amdhsa_next_free_sgpr 102
  .amdhsa_accum_offset 176
  .amdhsa_group_segment_fixed_size 0
  .amdhsa_kernarg_size 64
  .amdhsa_user_sgpr_count 2
  .amdhsa_user_sgpr_kernarg_segment_ptr 1
  .amdhsa_system_sgpr_workgroup_id_x 1
.end_amdhsa_kernel
"""
    return head + a.text() + tail

if __name__ == "__main__":
    out = sys.argv[1]
    kw = eval("dict(%s)" % (sys.argv[2] if len(sys.argv) > 2 else ""))
    open(out, "w").write(gen(**kw))
    import build
    print(build.build(out), "lds", LDS_BYTES)
```

```python
import sys

KNAME = "standalone__low_rank_proj_linformer__decode_kernel"

P_OFF = 0x000000
W2_OFF = 0x200000
O_OFF = 0x400000
C_OFF = 0x600000
M_OFF = 0x620000
ST_OFF = 0x700000
WS_SIZE = 0x800000
SENT = 0xFFFFFFFF

RING = 0
STAGE, SROW = 65536, 1040
SS = STAGE + 64 * SROW
PS = SS + 2048
PK = PS + 4096
OP = PK + 1024
FLAGS = OP + 16384
FL_LAND, FL_CONS, FL_S, FL_O, FL_P, FL_E, FL_F, FL_RST = FLAGS, FLAGS + 16, FLAGS + 32, FLAGS + 48, FLAGS + 64, FLAGS + 80, FLAGS + 84, FLAGS + 88
FL_TOT, FL_LPROG, FL_W3, FL_TQ = FLAGS + 4, FLAGS + 8, FLAGS + 92, FLAGS + 96
WS3, WQ = STAGE, STAGE + 4096
LDS_BYTES = FLAGS + 256

class A:
    def __init__(self): self.l = []
    def __call__(self, s):
        for x in s.split("\n"):
            x = x.strip()
            if x: self.l.append(("" if x.endswith(":") else "  ") + x)
    def text(self): return "\n".join(self.l)

def vr(b, n=1): return f"v{b}" if n == 1 else f"v[{b}:{b+n-1}]"

def gen(W=20, stamps=False, guard=False, dbgtime=False, kflags="nt", vflags="nt", eflags="", dmadepth=8, msleep=16, hprio=0, csleep=1, noef=False, nocons=False, lin=False, nohelp=False, nochk=False, nopub=False, fakecons=False, fakehelp=False, noread=False, nocomp=False, hmode=0, hsleep=None, htest=None, swapkv=False, early=True, outflags='', NP=0, D=1, WE=0, NE=0):
    a = A()
    N = KNAME
    NS3 = 8 - NP
    U0 = 56 + NS3
    NTK = 16 * NP
    lab = lambda s: f"L_{s}"
    def sleep(n):
        g = f"\ns_add_u32 s97, s97, 1\ns_cmp_gt_u32 s97, 0x40000\ns_cbranch_scc1 {lab('done')}" if guard else ""
        return f"s_sleep {n}" + g
    def srd(base, plo, phi, size):
        a(f"s_mov_b32 s{base}, s{plo}\ns_and_b32 s{base+1}, s{phi}, 0xffff\ns_mov_b32 s{base+2}, {size}\ns_mov_b32 s{base+3}, 0x20000")
    def stamp(idx, vst):
        if stamps:
            a(f"s_memrealtime s[98:99]\ns_waitcnt lgkmcnt(0)\nv_writelane_b32 v{vst}, s98, {idx}")
    def stamp_s(sidx, add, vst):
        if stamps:
            a(f"s_add_u32 s96, {sidx}, {add}\ns_mov_b32 m0, s96\ns_memrealtime s[98:99]\ns_waitcnt lgkmcnt(0)\nv_writelane_b32 v{vst}, s98, m0")
    def stamp_store(vst, vtmp, slot):
        if stamps:
            a(f"s_lshl_b32 s98, s2, 3\ns_add_u32 s98, s98, {slot}\ns_lshl_b32 s98, s98, 8\ns_add_u32 s98, s98, {ST_OFF}")
            a(f"v_mbcnt_lo_u32_b32 v{vtmp}, -1, 0\nv_mbcnt_hi_u32_b32 v{vtmp}, -1, v{vtmp}\nv_lshlrev_b32 v{vtmp}, 2, v{vtmp}")
            a(f"buffer_store_dword v{vst}, v{vtmp}, s[32:35], s98 offen\ns_waitcnt vmcnt(0)")
    def ldswait(tag, vaddr, vtmp, target, slp, cmp="s_cmp_ge_i32"):
        a(f"{lab(tag)}:\nds_read_b32 v{vtmp}, v{vaddr}\ns_waitcnt lgkmcnt(0)\nv_readfirstlane_b32 s50, v{vtmp}\n{cmp} s50, {target}\ns_cbranch_scc1 {lab(tag+'_ok')}\n{sleep(slp)}\ns_branch {lab(tag)}\n{lab(tag+'_ok')}:")
    def one_lane(instr):
        a(f"s_mov_b64 exec, 1\n{instr}\ns_mov_b64 exec, -1")
    COL0 = "s_mov_b32 s46, 0x00010001\ns_mov_b32 s47, 0x00010001\ns_mov_b64 exec, s[46:47]"

    a(f"{N}:")
    a(f"s_cmp_ge_u32 s2, 256\ns_cbranch_scc1 {lab('done')}")
    if stamps: a("s_memrealtime s[92:93]")
    a("s_load_dwordx16 s[4:19], s[0:1], 0")
    if guard: a("s_mov_b32 s97, 0")
    a("v_lshrrev_b32 v1, 6, v0\nv_and_b32 v2, 63, v0")
    a("s_and_b32 s3, s2, 7\ns_lshr_b32 s24, s2, 3")
    a("v_readfirstlane_b32 s20, v1")
    a("s_and_b32 s21, s24, 15\ns_lshr_b32 s24, s24, 4\ns_lshl_b32 s24, s24, 3\ns_add_u32 s22, s24, s3\ns_lshl_b32 s23, s21, 2")
    a(f"s_cmp_lt_u32 s20, 4\ns_cbranch_scc1 {lab('consumer')}")
    a(f"s_cmp_eq_u32 s20, 5\ns_cbranch_scc1 {lab('helper')}")

    vL16 = 3; vLand = 4; vT = 5; vC = 8; vST = 12
    a(f"v_lshlrev_b32 v{vL16}, 4, v2\nv_mov_b32 v{vLand}, {FL_LAND}\nv_mov_b32 v6, {FL_CONS}")
    a("s_lshl_b32 s40, s23, 22\ns_lshl_b32 s41, s22, 18\ns_add_u32 s40, s40, s41")
    if stamps: a(f"v_mov_b32 v{vST}, 0")
    a("s_waitcnt lgkmcnt(0)")
    if stamps: a(f"v_writelane_b32 v{vST}, s92, 11")
    stamp(12, vST)
    srd(24, 6, 7, 0x10000000)
    srd(32, 18, 19, WS_SIZE)
    EARLY = 16 if early else 0
    for p in range(0, EARLY, 4):
        a(f"s_mov_b32 m0, {p*1024}\ns_add_u32 s48, s40, {p*1024}")
        for pp in range(4):
            a(f"buffer_load_dwordx4 v{vL16}, s[24:27], s48 offen offset:{pp*1024} {kflags} lds")
    stamp(13, vST)
    a("s_barrier")
    stamp(0, vST)
    if stamps: a("s_waitcnt vmcnt(15)")
    stamp(14, vST)
    if stamps: a("s_memtime s[62:63]\ns_waitcnt lgkmcnt(0)")
    a(f"s_mov_b32 s41, 0\ns_mov_b32 s60, 0\nds_read_b128 {vr(vC,4)}, v6")
    if early:
        a("s_mov_b32 s42, s40\ns_mov_b32 s43, 0\ns_mov_b32 s44, 0\ns_mov_b32 s45, -1")
        a(f"s_branch {lab('lkg2')}")
    def unit_body(tag, flags, W=W):
        for grp in range(4):
            if grp == 2 and tag == "lk": a(f"{lab('lkg2')}:")
            if nocons and not fakecons or nochk: a(f"s_branch {lab(f'{tag}c{grp}_ok2')}")
            a(f"s_waitcnt lgkmcnt(0)\nv_readfirstlane_b32 s50, v{vC+grp}\ns_cmp_ge_i32 s50, s45\ns_cbranch_scc1 {lab(f'{tag}c{grp}_ok')}")
            a(f"{lab(f'{tag}c{grp}')}:\nds_read_b128 {vr(vC,4)}, v6\ns_waitcnt lgkmcnt(0)\nv_readfirstlane_b32 s50, v{vC+grp}\ns_cmp_ge_i32 s50, s45\ns_cbranch_scc1 {lab(f'{tag}c{grp}_ok')}\ns_add_u32 s60, s60, 1\n{sleep(1)}\ns_branch {lab(f'{tag}c{grp}')}\n{lab(f'{tag}c{grp}_ok')}:")
            a(f"ds_read_b128 {vr(vC,4)}, v6\n{lab(f'{tag}c{grp}_ok2')}:")
            for half in range(2):
                off = grp * 8192 + half * 4096
                a(f"s_add_u32 m0, s43, {off}\ns_add_u32 s48, s42, {off}")
                for pp in range(4):
                    p = grp * 8 + half * 4 + pp
                    a(f"s_waitcnt vmcnt({W-1})")
                    if (p - W + 1) % 8 == 0:
                        a(f"s_add_i32 s51, s44, {p-W+1}\nv_mov_b32 v{vT}, s51")
                        one_lane(f"ds_write_b32 v{vLand}, v{vT}")
                    a(f"buffer_load_dwordx4 v{vL16}, s[24:27], s48 offen offset:{pp*1024} {flags} lds")
    def unit_consts():
        a("s_and_b32 s43, s41, 1\ns_lshl_b32 s43, s43, 15\ns_lshl_b32 s44, s41, 5\ns_sub_u32 s45, s41, 1")
    def lprog():
        a(f"v_mov_b32 v{vT}, s41")
        one_lane(f"ds_write_b32 v{vLand}, v{vT} offset:8")
    def loader_loop(tag, flags, uend, W=W):
        a(f"{lab(tag)}:")
        a("s_lshr_b32 s42, s41, 3\ns_and_b32 s42, s42, 3\ns_lshl_b32 s42, s42, 22\ns_and_b32 s43, s41, 7\ns_lshl_b32 s43, s43, 15\ns_add_u32 s42, s42, s43\ns_add_u32 s42, s42, s40")
        if lin: a("s_and_b32 s42, s41, 31\ns_lshl_b32 s42, s42, 15\ns_lshl_b32 s43, s2, 20\ns_add_u32 s42, s42, s43")
        unit_consts()
        if NP and tag in ("lv", "lw"): lprog()
        unit_body(tag, flags, W)
        if stamps:
            a(f"s_and_b32 s49, s41, 7\ns_cmp_eq_u32 s49, 7\ns_cbranch_scc0 {lab(tag+'nost')}\ns_lshr_b32 s49, s41, 3")
            stamp_s("s49", 1, vST)
            a(f"{lab(tag+'nost')}:")
        a(f"s_add_u32 s41, s41, 1\ns_cmp_lt_u32 s41, {uend}\ns_cbranch_scc1 {lab(tag)}")
    if swapkv: a("s_mov_b32 s24, s8\ns_and_b32 s25, s9, 0xffff")
    loader_loop("lk", kflags, 32)
    if swapkv: a("s_mov_b32 s24, s6\ns_and_b32 s25, s7, 0xffff")
    else: a("s_mov_b32 s24, s8\ns_and_b32 s25, s9, 0xffff")
    WL = W
    if NE:
        loader_loop("lv", vflags, U0 - NE)
        loader_loop("lw", vflags, U0, WE)
        WL = WE
    else:
        loader_loop("lv", vflags, U0)
    if NP:
        lg = NP.bit_length() - 1
        a(f"s_mov_b32 s52, 0\ns_add_u32 s53, s23, 3\ns_lshl_b32 s53, s53, 22\ns_add_u32 s53, s53, {NS3 << 15}")
        a(f"s_mul_i32 s54, s21, {NTK*256}\ns_add_u32 s54, s54, {W2_OFF}")
        a(f"{lab('lp')}:")
        lprog()
        a(f"s_and_b32 s49, s52, 3\ns_lshl_b32 s49, s49, 3\ns_add_u32 s49, s49, {FL_TQ}\nv_mov_b32 v7, s49\ns_add_u32 s52, s52, 1")
        a(f"{lab('lptk')}:\nds_read_b64 v[14:15], v7\ns_waitcnt lgkmcnt(0)\nv_readfirstlane_b32 s55, v14\nv_readfirstlane_b32 s56, v15\ns_cmp_eq_u32 s56, s52\ns_cbranch_scc1 {lab('lptk_ok')}\n{sleep(1)}\ns_branch {lab('lptk')}\n{lab('lptk_ok')}:")
        a(f"s_cmp_ge_u32 s55, {NTK}\ns_cbranch_scc1 {lab('lpend')}")
        a(f"s_lshr_b32 s42, s55, {lg}\ns_lshl_b32 s42, s42, 18\ns_and_b32 s43, s55, {NP-1}\ns_lshl_b32 s43, s43, 15\ns_add_u32 s42, s42, s43\ns_add_u32 s42, s42, s53")
        a(f"s_lshl_b32 s48, s55, 8\ns_add_u32 s48, s48, s54\ns_and_b32 s43, s41, 3\ns_lshl_b32 s43, s43, 8\ns_add_u32 m0, s43, {WQ}")
        a(f"s_mov_b64 exec, 0xffff\nbuffer_load_dwordx4 v{vL16}, s[32:35], s48 offen sc1 lds\ns_mov_b64 exec, -1")
        unit_consts()
        a(f"ds_read_b128 {vr(vC,4)}, v6")
        unit_body("lq", vflags, WL)
        a(f"s_add_u32 s41, s41, 1\ns_branch {lab('lp')}")
        a(f"{lab('lpend')}:")
        a(f"v_mov_b32 v{vT}, s41")
        one_lane(f"ds_write_b32 v{vLand}, v{vT} offset:4")
        a("s_lshl_b32 s44, s41, 5")
        for o in range(-((WL - 1) // 8) * 8, 1, 8):
            a(f"s_waitcnt vmcnt({-o})\ns_add_i32 s51, s44, {o}\nv_mov_b32 v{vT}, s51")
            one_lane(f"ds_write_b32 v{vLand}, v{vT}")
        if stamps: a(f"v_writelane_b32 v{vST}, s41, 28")
    else:
        tot = 2048
        for tgt in range(((tot - WL + 1) + 7) // 8 * 8, tot + 1, 8):
            a(f"s_waitcnt vmcnt({tot - tgt})\nv_mov_b32 v{vT}, {tgt}")
            one_lane(f"ds_write_b32 v{vLand}, v{vT}")
    a("s_waitcnt lgkmcnt(0)")
    stamp(9, vST)
    if stamps: a(f"s_memtime s[64:65]\ns_waitcnt lgkmcnt(0)\ns_sub_u32 s64, s64, s62\nv_writelane_b32 v{vST}, s64, 29")
    if stamps: a(f"s_getreg_b32 s49, hwreg(HW_REG_XCC_ID)\nv_writelane_b32 v{vST}, s49, 30\nv_writelane_b32 v{vST}, s60, 31")
    stamp_store(vST, vT, 2)
    a(f"s_branch {lab('done')}")

    a(f"{lab('consumer')}:")
    R = 4; Qr = 36; EF = 52; ACC = 116; X = 132; TMP = 140; BB = 148; W4 = 156
    vRdK = 160; vRdV = 161; vSa = 162; vBa = 163; vPsa = 164; vWs = 165; vOa = 166; vLand = 167; vCons = 168; vT = 169; vA = 170
    vOne = 171; vFl = 172; vST = 173; vG16 = 174; vWs0 = 175; vT2 = 3
    Aa = X; DD = ACC
    a(f"v_and_b32 v{vT}, 31, v2\nv_lshlrev_b32 v{vT}, 4, v{vT}\ns_lshl_b32 s41, s23, 9")
    a("s_waitcnt lgkmcnt(0)")
    srd(36, 4, 5, 32768)
    for g in range(4):
        a(f"buffer_load_dwordx4 {vr(Qr+4*g,4)}, v{vT}, s[36:39], s41 offen offset:{g*512}")
    srd(32, 18, 19, WS_SIZE)
    a(f"s_lshl_b32 s40, s20, 13")
    a(f"v_lshlrev_b32 v{vRdK}, 4, v2\nv_add_u32 v{vRdK}, s40, v{vRdK}")
    a(f"v_lshrrev_b32 v{vG16}, 4, v2\nv_lshlrev_b32 v{vRdV}, 11, v{vG16}\nv_and_b32 v{vT}, 15, v2\nv_lshlrev_b32 v{vT}, 4, v{vT}\nv_add_u32 v{vRdV}, v{vRdV}, v{vT}\nv_add_u32 v{vRdV}, s40, v{vRdV}")
    a(f"v_lshlrev_b32 v{vG16}, 4, v{vG16}")
    a(f"s_lshl_b32 s42, s20, 9\ns_add_u32 s42, s42, {SS}")
    a(f"v_and_b32 v{vSa}, 16, v2\nv_lshrrev_b32 v{vSa}, 2, v{vSa}\nv_and_b32 v{vT}, 8, v2\nv_add_u32 v{vSa}, v{vSa}, v{vT}")
    a(f"v_and_b32 v{vT}, 4, v2\nv_lshlrev_b32 v{vT}, 2, v{vT}\nv_add_u32 v{vSa}, v{vSa}, v{vT}")
    a(f"v_lshrrev_b32 v{vT}, 5, v2\nv_lshlrev_b32 v{vT}, 1, v{vT}\nv_add_u32 v{vSa}, v{vSa}, v{vT}\nv_add_u32 v{vSa}, s42, v{vSa}")
    a(f"v_and_b32 v{vT}, 1, v2\nv_lshlrev_b32 v{vBa}, 8, v{vT}\nv_add_u32 v{vBa}, v{vBa}, v{vG16}\nv_add_u32 v{vBa}, s42, v{vBa}")
    a(f"v_add_u32 v{vWs0}, s42, v{vG16}")
    a(f"s_lshl_b32 s43, s20, 8\ns_add_u32 s43, s43, {PS}\nv_add_u32 v{vPsa}, s43, v{vG16}")
    a(f"v_lshrrev_b32 v{vOa}, 5, v2\nv_lshlrev_b32 v{vOa}, 9, v{vOa}\nv_and_b32 v{vT}, 15, v2\nv_lshlrev_b32 v{vT}, 5, v{vT}\nv_add_u32 v{vOa}, v{vOa}, v{vT}")
    a(f"v_and_b32 v{vT}, 16, v2\nv_lshrrev_b32 v{vT}, 2, v{vT}\nv_add_u32 v{vOa}, v{vOa}, v{vT}\ns_lshl_b32 s43, s20, 10\ns_add_u32 s43, s43, {OP}\nv_add_u32 v{vOa}, s43, v{vOa}")
    a(f"v_mov_b32 v{vLand}, {FL_LAND}\ns_lshl_b32 s43, s20, 2\ns_add_u32 s43, s43, {FL_CONS}\nv_mov_b32 v{vCons}, s43\nv_mov_b32 v{vOne}, 1")
    a("s_mov_b32 s55, 0xffff0000")
    if stamps: a(f"v_mov_b32 v{vST}, 0")
    a("s_barrier")
    if nocons: a(f"s_branch {lab('done')}")
    stamp(0, vST)
    a("s_waitcnt vmcnt(0)")
    a("s_mov_b32 s41, 0\ns_lshl_b32 s44, s20, 3\ns_add_u32 s44, s44, 8")

    def unit_head(tag, vbase):
        ldswait(tag, vLand, vT, "s44", csleep)
        a(f"s_and_b32 s45, s41, 1\ns_lshl_b32 s45, s45, 15\nv_add_u32 v{vA}, s45, v{vbase}")
    def signal_consumed():
        a(f"s_add_u32 s45, s41, 1\nv_mov_b32 v{vT}, s45")
        one_lane(f"ds_write_b32 v{vCons}, v{vT}")

    a(f"{lab('kunit')}:")
    unit_head("kw", vRdK)
    for t in range(8 if not noread else 0): a(f"ds_read_b128 {vr(R+4*t,4)}, v{vA} offset:{t*1024}")
    for t in range(8):
        a(f"s_waitcnt lgkmcnt({7-t})")
        if t == 7: signal_consumed()
        if noread or nocomp: continue
        r = R + 4 * t
        a(f"v_dot2_f32_bf16 v{Aa+t}, v{r}, v{Qr}, 0")
        for i in range(1, 4): a(f"v_dot2_f32_bf16 v{Aa+t}, v{r+i}, v{Qr+i}, v{Aa+t}")
    a("s_nop 0")
    for p in range(4): a(f"v_permlane16_swap_b32 v{Aa+2*p}, v{Aa+2*p+1}")
    for p in range(4): a(f"v_add_f32 v{TMP+p}, v{Aa+2*p}, v{Aa+2*p+1}")
    c0, c1, d = TMP + 4, TMP + 5, TMP + 6
    a(f"v_add_f32_dpp v{c0}, v{TMP}, v{TMP} row_ror:8 row_mask:0xf bank_mask:0x3")
    a(f"v_add_f32_dpp v{c0}, v{TMP+1}, v{TMP+1} row_ror:8 row_mask:0xf bank_mask:0xc")
    a(f"v_add_f32_dpp v{c1}, v{TMP+2}, v{TMP+2} row_ror:8 row_mask:0xf bank_mask:0x3")
    a(f"v_add_f32_dpp v{c1}, v{TMP+3}, v{TMP+3} row_ror:8 row_mask:0xf bank_mask:0xc")
    a("s_nop 0")
    a(f"v_add_f32_dpp v{d}, v{c0}, v{c0} row_half_mirror row_mask:0xf bank_mask:0x5")
    a(f"v_add_f32_dpp v{d}, v{c1}, v{c1} row_half_mirror row_mask:0xf bank_mask:0xa")
    a("s_nop 1")
    a(f"v_add_f32_dpp v{d}, v{d}, v{d} quad_perm:[1,0,3,2] row_mask:0xf bank_mask:0xf")
    a("s_nop 1")
    a(f"v_add_f32_dpp v{d}, v{d}, v{d} quad_perm:[2,3,0,1] row_mask:0xf bank_mask:0xf")
    a(f"v_cvt_pk_bf16_f32 v{c0}, v{d}, v{d}")
    a(f"s_and_b32 s45, s41, 7\ns_lshl_b32 s46, s45, 5\nv_add_u32 v{vT}, s46, v{vSa}")
    a(f"v_lshlrev_b32 v{c1}, 16, v{c0}")
    a(f"ds_write_b16 v{vT}, v{c0}")
    a(f"v_sub_f32 v{c1}, v{d}, v{c1}")
    a(f"v_cvt_pk_bf16_f32 v{TMP}, v{c1}, v{c1}")
    a(f"ds_write_b16 v{vT}, v{TMP} offset:256")
    a(f"s_cmp_eq_u32 s45, 7\ns_cbranch_scc0 {lab('knoend')}")
    a(f"s_cmp_eq_u32 s41, 7\ns_cbranch_scc0 {lab('noE')}")
    a(f"v_mov_b32 v{vFl}, {FL_E}")
    ldswait("wE", vFl, vT, "1", 2)
    a(f"v_and_b32 v{vT}, 15, v2\nv_mul_u32_u24 v{vA}, {SROW}, v{vT}\nv_lshrrev_b32 v{vT}, 5, v2\nv_lshlrev_b32 v{vT}, 7, v{vT}\nv_add_u32 v{vA}, v{vA}, v{vT}")
    a(f"v_and_b32 v{vT}, 16, v2\nv_add_u32 v{vA}, v{vA}, v{vT}\ns_lshl_b32 s45, s20, 5\ns_add_u32 s45, s45, {STAGE}\nv_add_u32 v{vA}, s45, v{vA}")
    for tl in range(4):
        for ks in range(4):
            a(f"ds_read_b128 {vr(EF+16*tl+4*ks,4)}, v{vA} offset:{tl*16*SROW+ks*256}")
        a("s_waitcnt lgkmcnt(4)")
    a(f"{lab('noE')}:")
    a("s_waitcnt lgkmcnt(0)")
    for ks in range(4): a(f"ds_read_b128 {vr(R+4*ks,4)}, v{vBa} offset:{ks*64}")
    for ks in range(4):
        a(f"s_waitcnt lgkmcnt({3-ks})")
        for tl in range(4):
            c = "0" if ks == 0 else vr(DD+4*tl, 4)
            a(f"v_mfma_f32_16x16x32_bf16 {vr(DD+4*tl,4)}, {vr(EF+16*tl+4*ks,4)}, {vr(R+4*ks,4)}, {c}")
    a(f"s_lshr_b32 s45, s41, 3\ns_lshl_b32 s48, s45, 10\nv_add_u32 v{vA}, s48, v{vPsa}\ns_lshl_b32 s48, s45, 2\ns_add_u32 s48, s48, {FL_S}\nv_mov_b32 v{vFl}, s48")
    a("s_nop 4")
    for i in range(16):
        a(f"v_add_f32_dpp v{DD+i}, v{DD+i}, v{DD+i} quad_perm:[1,0,3,2] row_mask:0xf bank_mask:0xf")
    a(COL0)
    for tl in range(4): a(f"ds_write_b128 v{vA}, {vr(DD+4*tl,4)} offset:{tl*64}")
    a("s_mov_b64 exec, -1\ns_waitcnt lgkmcnt(0)")
    one_lane(f"ds_add_u32 v{vFl}, v{vOne}")
    for i in range(12): a(f"v_mov_b32 v{Qr+i}, v{Qr+4+i}")
    stamp_s("s45", 1, vST)
    a(f"{lab('knoend')}:")
    a(f"s_add_u32 s41, s41, 1\ns_add_u32 s44, s44, 32\ns_cmp_lt_u32 s41, 32\ns_cbranch_scc1 {lab('kunit')}")

    a(f"v_mov_b32 v{vFl}, {FL_F}")
    ldswait("wF", vFl, vT, "1", 2)
    a(f"v_and_b32 v{vT}, 15, v2\nv_lshrrev_b32 v{vT}, 2, v{vT}\nv_lshrrev_b32 v{vA}, 4, v2\nv_lshl_add_u32 v{vA}, v{vA}, 3, v{vT}\nv_mul_u32_u24 v{vA}, {SROW}, v{vA}")
    a(f"v_and_b32 v{vT}, 3, v2\nv_lshlrev_b32 v{vT}, 3, v{vT}\nv_add_u32 v{vA}, v{vA}, v{vT}\ns_lshl_b32 s45, s20, 5\ns_add_u32 s45, s45, {STAGE}\nv_add_u32 v{vA}, s45, v{vA}")
    n = 0
    for uu in range(8):
        for ks in range(2):
            for hf in range(2):
                a(f"ds_read_b64_tr_b16 {vr(EF+(uu*2+ks)*4+2*hf,2)}, v{vA} offset:{(32*ks+4*hf)*SROW+uu*128}")
                n += 1
                if n % 8 == 0: a("s_waitcnt lgkmcnt(4)")
    a("s_waitcnt lgkmcnt(0)")
    for i in range(16): a(f"v_mov_b32 v{ACC+i}, 0")
    stamp(5, vST)

    def w_tiles(pk_off_sgpr_or_imm, uus, dst_addr, offs):
        a(f"v_and_b32 v{vT}, 1, v2\nv_lshlrev_b32 v{vT}, 7, v{vT}\nv_add_u32 v{vT}, v{vT}, v{vG16}\nv_add_u32 v{vT}, {pk_off_sgpr_or_imm}, v{vT}")
        a(f"ds_read_b128 {vr(BB,4)}, v{vT}\nds_read_b128 {vr(BB+4,4)}, v{vT} offset:64\ns_waitcnt lgkmcnt(0)")
        for n, uu in enumerate(uus):
            a(f"v_mfma_f32_16x16x32_bf16 {vr(R+4*n,4)}, {vr(EF+uu*8,4)}, {vr(BB,4)}, 0")
        if len(uus) < 4: a("s_nop 7")
        for n, uu in enumerate(uus):
            a(f"v_mfma_f32_16x16x32_bf16 {vr(R+4*n,4)}, {vr(EF+uu*8+4,4)}, {vr(BB+4,4)}, {vr(R+4*n,4)}")
        a("s_nop 7\ns_nop 1")
        for i in range(4 * len(uus)):
            a(f"v_add_f32_dpp v{R+i}, v{R+i}, v{R+i} quad_perm:[1,0,3,2] row_mask:0xf bank_mask:0xf")
        a(COL0)
        for n, uu in enumerate(uus): a(f"ds_write_b128 v{dst_addr}, {vr(R+4*n,4)} offset:{offs[n]}")
        a("s_mov_b64 exec, -1")
    def v_body():
        for i in range(4 if not noread else 0):
            for hf in range(2):
                a(f"ds_read_b128 {vr(R+4*(2*i+hf),4)}, v{vA} offset:{i*512+hf*256}")
        for k in range(8):
            i, hf = k >> 1, k & 1
            a(f"s_waitcnt lgkmcnt({7-k})")
            if k == 7: signal_consumed()
            if noread or nocomp: continue
            r = R + 4 * k
            for e in range(4):
                a(f"v_lshlrev_b32 v{X+2*e}, 16, v{r+e}\nv_and_b32 v{X+2*e+1}, s55, v{r+e}")
            wp = W4 + (i & ~1)
            sel = "op_sel_hi:[1,0,1]" if i % 2 == 0 else "op_sel:[0,1,0] op_sel_hi:[1,1,1]"
            for e in range(4):
                ac = ACC + 8 * hf + 2 * e
                a(f"v_pk_fma_f32 {vr(ac,2)}, {vr(X+2*e,2)}, {vr(wp,2)}, {vr(ac,2)} {sel}")
    a("s_mov_b32 s49, 0")
    a(f"{lab('vhead')}:")
    a(f"s_lshl_b32 s48, s49, 2\ns_add_u32 s48, s48, {FL_P}\nv_mov_b32 v{vFl}, s48")
    ldswait("wP", vFl, vT, "1", 2)
    if NP:
        a(f"s_cmp_eq_u32 s49, 2\ns_cbranch_scc0 {lab('now3')}")
        a(f"s_lshl_b32 s48, s20, 6\ns_add_u32 s48, s48, {WS3}\nv_add_u32 v{vA}, s48, v{vG16}")
        w_tiles(PK + 3 * 256, list(range(NS3, 8)), vA, [n * 256 for n in range(NP)])
        a(f"v_mov_b32 v{vFl}, {FL_W3}\ns_waitcnt lgkmcnt(0)")
        one_lane(f"ds_add_u32 v{vFl}, v{vOne}")
        a(f"{lab('now3')}:")
        if NS3 == 0:
            a(f"s_cmp_eq_u32 s49, 3\ns_cbranch_scc1 {lab('vpool')}")
    a(f"s_lshl_b32 s48, s49, 8\ns_add_u32 s48, s48, {PK}")
    w_tiles("s48", list(range(8)), vWs0, [uu * 64 for uu in range(8)])
    a(f"v_mov_b32 v{vWs}, v{vWs0}\ns_waitcnt lgkmcnt(0)")
    a(f"{lab('vunit')}:")
    unit_head("vw", vRdV)
    a(f"ds_read_b128 {vr(W4,4)}, v{vWs}")
    v_body()
    a(f"v_add_u32 v{vWs}, 64, v{vWs}")
    a(f"s_and_b32 s45, s41, 7\ns_add_u32 s41, s41, 1\ns_add_u32 s44, s44, 32")
    if NP and NS3:
        a(f"s_cmp_eq_u32 s41, {U0}\ns_cbranch_scc1 {lab('vpool')}")
    a(f"s_cmp_eq_u32 s45, 7\ns_cbranch_scc0 {lab('vunit')}")
    if NP:
        a(f"s_branch {lab('vhend')}")
        a(f"{lab('vpool')}:")
        a(f"s_lshl_b32 s48, s20, 6\ns_add_u32 s48, s48, {WQ}\nv_add_u32 v{vWs0}, s48, v{vG16}")
        a(f"{lab('vpw')}:\nds_read_b64 v[{X}:{X+1}], v{vLand}\ns_waitcnt lgkmcnt(0)\nv_readfirstlane_b32 s50, v{X}\nv_readfirstlane_b32 s51, v{X+1}")
        a(f"s_cmp_ge_i32 s50, s44\ns_cbranch_scc1 {lab('vpw_ok')}")
        a(f"s_cmp_eq_u32 s51, 0\ns_cbranch_scc1 {lab('vpw_sl')}\ns_cmp_ge_u32 s41, s51\ns_cbranch_scc1 {lab('vhend')}")
        a(f"{lab('vpw_sl')}:\n{sleep(csleep)}\ns_branch {lab('vpw')}\n{lab('vpw_ok')}:")
        a(f"s_and_b32 s45, s41, 1\ns_lshl_b32 s45, s45, 15\nv_add_u32 v{vA}, s45, v{vRdV}")
        a(f"s_and_b32 s45, s41, 3\ns_lshl_b32 s45, s45, 8\nv_add_u32 v{vWs}, s45, v{vWs0}")
        a(f"ds_read_b128 {vr(W4,4)}, v{vWs}")
        v_body()
        a(f"s_add_u32 s41, s41, 1\ns_add_u32 s44, s44, 32\ns_branch {lab('vpw')}")
    a(f"{lab('vhend')}:")
    for e in range(8): a(f"v_permlane32_swap_b32 v{ACC+e}, v{ACC+8+e}")
    for e in range(8): a(f"v_add_f32 v{X+e}, v{ACC+e}, v{ACC+8+e}")
    a(f"s_lshl_b32 s48, s49, 12\nv_add_u32 v{vA}, s48, v{vOa}\ns_lshl_b32 s48, s49, 2\ns_add_u32 s48, s48, {FL_O}\nv_mov_b32 v{vFl}, s48")
    for q in range(4): a(f"v_permlane16_swap_b32 v{X+2*q}, v{X+2*q+1}")
    for q in range(4): a(f"v_add_f32 v{TMP+q}, v{X+2*q}, v{X+2*q+1}")
    for q in range(4): a(f"ds_write_b32 v{vA}, v{TMP+q} offset:{8*q}")
    for i in range(16): a(f"v_mov_b32 v{ACC+i}, 0")
    a("s_waitcnt lgkmcnt(0)")
    one_lane(f"ds_add_u32 v{vFl}, v{vOne}")
    stamp_s("s49", 6, vST)
    a(f"s_add_u32 s49, s49, 1\ns_cmp_lt_u32 s49, 4\ns_cbranch_scc1 {lab('vhead')}")
    srd(36, 14, 15, 32768)
    a(f"s_lshl_b32 s45, s20, 2\ns_add_u32 s45, s45, {FL_O}\nv_mov_b32 v{vFl}, s45")
    a(f"v_lshlrev_b32 v{vA}, 4, v2\ns_lshl_b32 s45, s20, 12\ns_add_u32 s45, s45, {OP}\nv_add_u32 v{vT2}, s45, v{vA}")
    a("s_add_u32 s44, s23, s20")
    a(f"s_lshl_b32 s45, s44, 14\ns_add_u32 s45, s45, {O_OFF}\ns_lshl_b32 s46, s22, 10\ns_add_u32 s46, s46, s45")
    a(f"s_lshl_b32 s47, s21, 8\ns_lshl_b32 s48, s20, 2\ns_add_u32 s47, s47, s48\ns_add_u32 s47, s47, {C_OFF + 16}")
    ldswait("wof", vFl, vT, "4", 1)
    for w in range(4): a(f"ds_read_b128 {vr(R+4*w,4)}, v{vT2} offset:{w*1024}")
    a(f"v_mov_b32 v{vT}, 0\nv_mov_b32 v{vFl}, 1")
    a("s_waitcnt lgkmcnt(0)")
    for i in range(4): a(f"v_add_f32 v{R+i}, v{R+i}, v{R+4+i}\nv_add_f32 v{R+8+i}, v{R+8+i}, v{R+12+i}")
    for i in range(4): a(f"v_add_f32 v{R+i}, v{R+i}, v{R+8+i}")
    a(f"buffer_store_dwordx4 {vr(R,4)}, v{vA}, s[32:35], s46 offen sc1\ns_waitcnt vmcnt(0)")
    one_lane(f"buffer_atomic_add v{vFl}, v{vT}, s[32:35], s47 offen sc0")
    a(f"s_waitcnt vmcnt(0)\nv_readfirstlane_b32 s50, v{vFl}")
    stamp(10, vST)
    a(f"s_cmp_eq_u32 s50, 15\ns_cbranch_scc0 {lab('cend')}")
    GB = 4
    for jj in range(16):
        a(f"buffer_load_dwordx4 {vr(GB+4*jj,4)}, v{vA}, s[32:35], s45 offen offset:{(jj%4)*1024} sc1")
        if jj % 4 == 3 and jj < 15: a("s_add_u32 s45, s45, 4096")
    a(f"v_lshlrev_b32 v{vT}, 3, v2\ns_lshl_b32 s45, s44, 9\ns_waitcnt vmcnt(0)")
    for st in (8, 4, 2, 1):
        for k in range(st):
            for i in range(4): a(f"v_add_f32 v{GB+4*k+i}, v{GB+4*k+i}, v{GB+4*(k+st)+i}")
    a(f"v_cvt_pk_bf16_f32 v{GB+4}, v{GB}, v{GB+1}\nv_cvt_pk_bf16_f32 v{GB+5}, v{GB+2}, v{GB+3}")
    a(f"buffer_store_dwordx2 {vr(GB+4,2)}, v{vT}, s[36:39], s45 offen {outflags}")
    a(f"{lab('cend')}:")
    if dbgtime:
        a(f"s_waitcnt vmcnt(0)\ns_memrealtime s[98:99]\ns_waitcnt lgkmcnt(0)\nv_mov_b32 v{vT}, s98\nv_mov_b32 v{vFl}, 0")
        one_lane(f"global_atomic_umax v{vFl}, v{vT}, s[16:17] offset:4")
    if stamps:
        a("s_waitcnt vmcnt(0)")
        stamp(11, vST)
        a(f"s_cmp_eq_u32 s20, 3\ns_cbranch_scc0 {lab('done')}")
        stamp_store(vST, vT, 0)
    a(f"s_branch {lab('done')}")

    a(f"{lab('helper')}:")
    if hprio: a(f"s_setprio {hprio}")
    vL16 = 3; vZ = 4; vOne = 5; vL4 = 10; vP = 13; vT1 = 14; vT2 = 15; vFl = 18; vST = 19; vOr = 20; vPsr = 21; vMo = 22
    AA = 48
    a(f"v_lshlrev_b32 v{vL4}, 2, v2\nv_mov_b32 v{vZ}, 0\nv_add_u32 v{vT1}, {FLAGS}, v{vL4}\nds_write_b32 v{vT1}, v{vZ}")
    a(f"v_lshlrev_b32 v{vL16}, 4, v2\nv_mov_b32 v{vOne}, 1")
    if dbgtime: a("s_memrealtime s[98:99]")
    a("s_waitcnt lgkmcnt(0)\ns_barrier")
    if fakehelp:
        a(f"v_mov_b32 v{vT1}, {FL_P}\nv_mov_b32 v24, 1\nv_mov_b32 v25, 1\nv_mov_b32 v26, 1\nv_mov_b32 v27, 1\nds_write_b128 v{vT1}, v[24:27]\nds_write_b128 v{vT1}, v[24:27] offset:16\ns_waitcnt lgkmcnt(0)\ns_branch {lab('done')}")
    if fakecons: a(f"v_mov_b32 v{vT1}, {FL_CONS}\nv_mov_b32 v24, 1000\nv_mov_b32 v25, 1000\nv_mov_b32 v26, 1000\nv_mov_b32 v27, 1000\nds_write_b128 v{vT1}, v[24:27]\ns_waitcnt lgkmcnt(0)")
    if htest:
        srd(32, 18, 19, WS_SIZE)
        a(f"v_mov_b32 v{vFl}, {FL_LAND}\ns_mov_b32 s42, 200\ns_lshl_b32 s46, s2, 10\ns_add_u32 s46, s46, {O_OFF}\ns_lshr_b32 s47, s2, 2\ns_lshl_b32 s47, s47, 8\ns_add_u32 s47, s47, {C_OFF}")
        a(f"s_lshr_b32 s45, s2, 4\ns_lshl_b32 s45, s45, 14\ns_add_u32 s45, s45, {O_OFF}")
        a(f"{lab('ht')}:")
        ldswait("htw", vFl, vT1, "s42", 16)
        for op in htest.split("+"):
            if op == "st1k": a(f"buffer_store_dwordx4 {vr(AA,4)}, v{vL16}, s[32:35], s46 offen sc1\ns_waitcnt vmcnt(0)")
            if op == "st1kp": a(f"buffer_store_dwordx4 {vr(AA,4)}, v{vL16}, s[32:35], s46 offen\ns_waitcnt vmcnt(0)")
            if op == "st1knt": a(f"buffer_store_dwordx4 {vr(AA,4)}, v{vL16}, s[32:35], s46 offen sc1 nt\ns_waitcnt vmcnt(0)")
            if op == "st256": a(f"buffer_store_dword v{AA}, v{vL4}, s[32:35], s46 offen sc1\ns_waitcnt vmcnt(0)")
            if op == "at":
                one_lane(f"buffer_atomic_add v{vOne}, v{vZ}, s[32:35], s47 offen offset:8 sc0")
                a(f"s_waitcnt vmcnt(0)\nv_mov_b32 v{vOne}, 1")
            if op == "ld16":
                for jj in range(16):
                    a(f"buffer_load_dwordx4 {vr(AA+4*jj,4)}, v{vL16}, s[32:35], s45 offen offset:{(jj%4)*1024} sc1")
                a("s_waitcnt vmcnt(0)")
            if op == "ld1": a(f"buffer_load_dword v{AA+8}, v{vL4}, s[32:35], s46 offen sc1\ns_waitcnt vmcnt(0)")
            if op == "st16x256":
                for m in range(16): a(f"buffer_store_dword v{AA}, v{vL4}, s[32:35], s45 offen offset:{m*256} sc1")
        a(f"s_add_u32 s42, s42, 256\ns_cmp_lt_u32 s42, 2048\ns_cbranch_scc1 {lab('ht')}\ns_branch {lab('done')}")
    if nocons or nohelp: a(f"s_branch {lab('done')}")
    if dbgtime:
        a(f"s_not_b32 s98, s98\nv_mov_b32 v{vT1}, s98")
        one_lane(f"global_atomic_umax v{vZ}, v{vT1}, s[16:17] offset:8")
    srd(24, 10, 11, 0x100000)
    srd(28, 12, 13, 0x100000)
    srd(32, 18, 19, WS_SIZE)
    srd(36, 14, 15, 32768)
    if stamps: a(f"v_mov_b32 v{vST}, 0")
    stamp(0, vST)
    def dma(tag, srdname):
        if noef or hmode == 2:
            a("s_waitcnt vmcnt(0)")
            return
        a(f"s_mov_b32 s40, {STAGE}\ns_lshl_b32 s41, s22, 10\ns_mov_b32 s43, 64\n{lab(tag)}:")
        a(f"s_mov_b32 m0, s40\ns_add_u32 s40, s40, {SROW}\nbuffer_load_dwordx4 v{vL16}, {srdname}, s41 offen {eflags} lds")
        a(f"s_add_u32 s41, s41, 16384\ns_waitcnt vmcnt({dmadepth-1})\ns_sub_u32 s43, s43, 1\ns_cmp_lg_u32 s43, 0\ns_cbranch_scc1 {lab(tag)}")
        a("s_waitcnt vmcnt(0)")
    a(f"s_lshl_b32 s58, s21, 8\ns_add_u32 s58, s58, {C_OFF}")
    a(f"s_lshl_b32 s59, s23, 8\ns_add_u32 s59, s59, {M_OFF}")
    a(f"s_cmp_lg_u32 s22, 0\ns_cbranch_scc1 {lab('noreset')}")
    for i in range(4): a(f"v_mov_b32 v{AA+i}, 0\nv_mov_b32 v{AA+4+i}, -1")
    a(f"s_mov_b64 exec, 3\nbuffer_store_dwordx4 {vr(AA,4)}, v{vL16}, s[32:35], s58 offen sc1\ns_mov_b64 exec, -1")
    a(f"buffer_store_dwordx4 {vr(AA+4,4)}, v{vL16}, s[32:35], s59 offen sc1")
    a(f"s_lshl_b32 s46, s21, 4\nv_mov_b32 v{vT1}, s46\ns_waitcnt vmcnt(0)")
    one_lane(f"global_store_dword v{vT1}, v{vOne}, s[16:17] sc1")
    a(f"{lab('noreset')}:")
    dma("edma", "s[24:27]")
    a(f"v_mov_b32 v{vFl}, {FL_E}\nds_write_b32 v{vFl}, v{vOne}")
    stamp(1, vST)
    vSr = 21; vL8 = 23
    a(f"v_add_u32 v{vOr}, {OP}, v{vL16}\nv_lshlrev_b32 v{vL8}, 3, v2")
    a(f"v_lshrrev_b32 v{vSr}, 4, v2\nv_and_b32 v{vSr}, 1, v{vSr}\nv_lshlrev_b32 v{vSr}, 10, v{vSr}\nv_and_b32 v{vT1}, 15, v2\nv_lshlrev_b32 v{vT1}, 4, v{vT1}\nv_add_u32 v{vSr}, v{vSr}, v{vT1}\nv_add_u32 v{vSr}, {PS}, v{vSr}")
    a(f"v_and_b32 v{vMo}, 1, v2\nv_lshlrev_b32 v{vMo}, 7, v{vMo}\nv_lshrrev_b32 v{vT1}, 1, v2\nv_lshlrev_b32 v{vT1}, 2, v{vT1}\nv_add_u32 v{vMo}, v{vMo}, v{vT1}")

    def wave_reduce(op, v, t1, t2):
        for ror in (8, 4, 2, 1):
            a(f"s_nop 1\n{op}_dpp v{v}, v{v}, v{v} row_ror:{ror} row_mask:0xf bank_mask:0xf")
        a(f"v_mov_b32 v{t1}, v{v}\nv_mov_b32 v{t2}, v{v}\ns_nop 1\nv_permlane16_swap_b32 v{t1}, v{t2}\n{op} v{v}, v{t1}, v{t2}")
        a(f"s_nop 0\nv_mov_b32 v{t1}, v{v}\nv_mov_b32 v{t2}, v{v}\ns_nop 1\nv_permlane32_swap_b32 v{t1}, v{t2}\n{op} v{v}, v{t1}, v{t2}")
    def wait_s(g):
        a(f"v_mov_b32 v{vFl}, {FL_S+4*g}")
        ldswait(f"s{g}w", vFl, vT1, "4", hsleep or 4)
    def s_publish(rd):
        t = f"r{rd}"
        if hmode in (1, 2, 4): return
        for w in range(4): a(f"ds_read_b128 {vr(AA+4*w,4)}, v{vSr} offset:{rd*2048+w*256}")
        a(f"s_lshl_b32 s45, s21, 1\ns_add_u32 s45, s45, {rd}\ns_lshl_b32 s45, s45, 13\ns_add_u32 s45, s45, {P_OFF}\ns_lshl_b32 s46, s22, 9\ns_add_u32 s46, s46, s45")
        a("s_waitcnt lgkmcnt(0)")
        for i in range(4): a(f"v_add_f32 v{AA+i}, v{AA+i}, v{AA+4+i}\nv_add_f32 v{AA+8+i}, v{AA+8+i}, v{AA+12+i}")
        for i in range(4): a(f"v_add_f32 v{AA+i}, v{AA+i}, v{AA+8+i}")
        a(f"s_mov_b32 exec_hi, 0\nbuffer_store_dwordx4 {vr(AA,4)}, v{vL16}, s[32:35], s46 offen sc1\ns_mov_b64 exec, -1")
        a(f"v_mov_b32 v{vT2}, 1")
        a("s_waitcnt vmcnt(0)")
        one_lane(f"buffer_atomic_add v{vT2}, v{vZ}, s[32:35], s58 offen offset:{4*rd} sc0")
        stamp(2 + 4 * rd, vST)
        a(f"s_waitcnt vmcnt(0)\nv_readfirstlane_b32 s50, v{vT2}")
        a(f"s_cmp_eq_u32 s50, 15\ns_cbranch_scc0 {lab(t+'_nl')}")
        for jj in range(16):
            if jj % 8 == 0 and jj: a("s_add_u32 s45, s45, 4096")
            for h in range(2):
                a(f"buffer_load_dword v{AA+16*h+jj}, v{vL4}, s[32:35], s45 offen offset:{(jj%8)*512+h*256} sc1")
        a("s_waitcnt vmcnt(0)")
        for h in range(2):
            B0 = AA + 16 * h
            T = AA + 40
            for st in (8, 4, 2, 1):
                for i in range(st): a(f"v_add_f32 v{B0+i}, v{B0+i}, v{B0+i+st}")
            a(f"v_mul_f32 v{vP}, 0x3db8aa3b, v{B0}")
            a(f"v_mov_b32 v{T+1}, v{vP}")
            wave_reduce("v_max_f32", T + 1, T + 2, T + 3)
            a(f"v_sub_f32 v{vP}, v{vP}, v{T+1}\nv_exp_f32 v{vP}, v{vP}\ns_nop 0\nv_mov_b32 v{T+1}, v{vP}")
            wave_reduce("v_add_f32", T + 1, T + 2, T + 3)
            a(f"v_rcp_f32 v{T+1}, v{T+1}\ns_nop 0\nv_mul_f32 v{vP}, v{vP}, v{T+1}")
            a(f"v_cvt_pk_bf16_f32 v{T}, v{vP}, v{vP}\nv_lshlrev_b32 v{T}, 16, v{T}\nv_sub_f32 v{T+1}, v{vP}, v{T}\ns_nop 1")
            a(f"v_mov_b32_dpp v{T+2}, v{vP} quad_perm:[1,0,3,2] row_mask:0xf bank_mask:0xf")
            a(f"v_mov_b32_dpp v{T+3}, v{T+1} quad_perm:[1,0,3,2] row_mask:0xf bank_mask:0xf")
            a(f"v_cvt_pk_bf16_f32 v{T+4}, v{vP}, v{T+2}\nv_cvt_pk_bf16_f32 v{T+5}, v{T+3}, v{T+1}")
            a(f"v_and_b32 v{T+6}, 1, v2\nv_cmp_eq_u32 vcc, 1, v{T+6}\ns_nop 1\nv_cndmask_b32 v{T+4}, v{T+4}, v{T+5}, vcc")
            a(f"v_mov_b32 v{T+5}, 0x7fc07fc0\nv_cmp_eq_u32 vcc, -1, v{T+4}\ns_nop 1\nv_cndmask_b32 v{T+8+h}, v{T+4}, v{T+5}, vcc")
        for h in range(2):
            a(f"buffer_store_dword v{AA+48+h}, v{vMo}, s[32:35], s59 offen offset:{(2*rd+h)*256} sc1")
        a(f"{lab(t+'_nl')}:")
        stamp(3 + 4 * rd, vST)
    def p_fetch(rd):
        t = f"p{rd}"
        if hmode in (1, 2, 4):
            a(f"v_mov_b32 v{vFl}, {FL_P+8*rd}\nds_write_b32 v{vFl}, v{vOne}\nds_write_b32 v{vFl}, v{vOne} offset:4")
            return
        a(f"{lab(t)}:\nbuffer_load_dwordx2 {vr(AA,2)}, v{vL8}, s[32:35], s59 offen offset:{rd*512} sc1\ns_waitcnt vmcnt(0)\nv_cmp_eq_u32 vcc, -1, v{AA}\nv_cmp_eq_u32 s[46:47], -1, v{AA+1}\ns_nop 1\ns_or_b64 vcc, vcc, s[46:47]\ns_cmp_eq_u64 vcc, 0\ns_cbranch_scc1 {lab(t+'_ok')}\n{sleep(msleep)}\ns_branch {lab(t)}\n{lab(t+'_ok')}:")
        a(f"v_add_u32 v{vT1}, {PK+rd*512}, v{vL8}\nds_write_b64 v{vT1}, {vr(AA,2)}\nv_mov_b32 v{vFl}, {FL_P+8*rd}\ns_waitcnt lgkmcnt(0)\nds_write_b32 v{vFl}, v{vOne}\nds_write_b32 v{vFl}, v{vOne} offset:4")
        stamp(4 + 4 * rd, vST)

    wait_s(0)
    dma("fdma", "s[28:31]")
    a(f"v_mov_b32 v{vFl}, {FL_F}\nds_write_b32 v{vFl}, v{vOne}")
    stamp(18, vST)
    if hmode not in (1, 2, 4):
        a(f"s_lshl_b32 s46, s21, 4\nv_mov_b32 v{vT1}, s46")
        a(f"{lab('wgo')}:\nglobal_load_dword v{vT2}, v{vT1}, s[16:17] sc1\ns_waitcnt vmcnt(0)\nv_readfirstlane_b32 s50, v{vT2}\ns_cmp_ge_u32 s50, 1\ns_cbranch_scc1 {lab('wgo_ok')}\n{sleep(32)}\ns_branch {lab('wgo')}\n{lab('wgo_ok')}:")
    wait_s(1); s_publish(0)
    wait_s(2); p_fetch(0)
    wait_s(3); s_publish(1)
    a(f"v_mov_b32 v{vFl}, {FL_O}")
    ldswait("wo0", vFl, vT1, "4", hsleep or 8)
    p_fetch(1)
    if NP:
        a(f"v_mov_b32 v{vFl}, {FL_W3}")
        ldswait("ww3", vFl, vT1, "4", 8)
        a(f"s_mul_i32 s45, s21, {NTK*256}\ns_mul_i32 s46, s22, {NP*256}\ns_add_u32 s45, s45, s46\ns_add_u32 s45, s45, {W2_OFF}")
        nst = (NP * 256 + 1023) // 1024
        for n in range(nst):
            a(f"v_add_u32 v{vT1}, {WS3 + n*1024}, v{vL16}\nds_read_b128 {vr(AA+4*n,4)}, v{vT1}")
        a("s_waitcnt lgkmcnt(0)")
        if NP * 256 < 1024: a(f"s_mov_b32 exec_lo, {hex((1 << (NP*16)) - 1) if NP*16 < 32 else -1}\ns_mov_b32 exec_hi, 0")
        for n in range(nst):
            a(f"buffer_store_dwordx4 {vr(AA+4*n,4)}, v{vL16}, s[32:35], s45 offen offset:{n*1024} sc1")
        a(f"s_mov_b64 exec, -1\nv_mov_b32 v{vT2}, 1\ns_waitcnt vmcnt(0)")
        one_lane(f"buffer_atomic_add v{vT2}, v{vZ}, s[32:35], s58 offen offset:8 sc0")
        a(f"s_waitcnt vmcnt(0)\nv_readfirstlane_b32 s50, v{vT2}\ns_cmp_eq_u32 s50, 15\ns_cbranch_scc1 {lab('wall_ok')}")
        a(f"{lab('wall')}:\n{sleep(32)}\nbuffer_load_dword v{vT2}, v{vZ}, s[32:35], s58 offen offset:8 sc1\ns_waitcnt vmcnt(0)\nv_readfirstlane_b32 s50, v{vT2}\ns_cmp_ge_u32 s50, 16\ns_cbranch_scc0 {lab('wall')}\n{lab('wall_ok')}:")
        stamp(10, vST)
        a(f"s_mov_b32 s42, 0\nv_mov_b32 v{vFl}, {FL_LPROG}")
        a(f"{lab('tk')}:\ns_add_u32 s43, s42, {U0 - D}")
        ldswait("tkw", vFl, vT1, "s43", 2)
        a(f"v_mov_b32 v{vT2}, 1")
        one_lane(f"buffer_atomic_add v{vT2}, v{vZ}, s[32:35], s58 offen offset:12 sc0")
        a(f"s_and_b32 s43, s42, 3\ns_lshl_b32 s43, s43, 3\ns_add_u32 s43, s43, {FL_TQ}\nv_mov_b32 v{vT1}, s43\ns_add_u32 s42, s42, 1\nv_mov_b32 v{AA+1}, s42\ns_waitcnt vmcnt(0)\nv_mov_b32 v{AA}, v{vT2}")
        one_lane(f"ds_write_b64 v{vT1}, {vr(AA,2)}")
        a(f"v_readfirstlane_b32 s50, v{vT2}\ns_cmp_lt_u32 s50, {NTK}\ns_cbranch_scc1 {lab('tk')}")
        stamp(11, vST)
    if stamps:
        a("s_waitcnt vmcnt(0)")
        stamp(24, vST)
        stamp_store(vST, vT1, 1)
    a(f"{lab('done')}:\ns_endpgm")

    head = f"""; Linformer low-rank-projection attention, decode step (B=4 H=16 Sq=1 Skv=8192 Dh=256 R=64), gfx950.
; @launch grid=(256,1,1) block=(384,1,1) lds={LDS_BYTES}
.amdgcn_target "amdgcn-amd-amdhsa--gfx950"
.text
.globl {N}
.p2align 8
.type {N},@function
"""
    tail = f"""
.section .rodata,"a"
.p2align 6
.amdhsa_kernel {N}
  .amdhsa_next_free_vgpr 176
  .amdhsa_next_free_sgpr 102
  .amdhsa_accum_offset 176
  .amdhsa_group_segment_fixed_size 0
  .amdhsa_kernarg_size 64
  .amdhsa_user_sgpr_count 2
  .amdhsa_user_sgpr_kernarg_segment_ptr 1
  .amdhsa_system_sgpr_workgroup_id_x 1
.end_amdhsa_kernel
"""
    return head + a.text() + tail

if __name__ == "__main__":
    out = sys.argv[1]
    kw = eval("dict(%s)" % (sys.argv[2] if len(sys.argv) > 2 else ""))
    open(out, "w").write(gen(**kw))
    import build
    print(build.build(out), "lds", LDS_BYTES)
```

```python
import sys

KNAME = "standalone__low_rank_proj_linformer__decode_kernel"

P_OFF = 0x000000
W2_OFF = 0x200000
O_OFF = 0x400000
C_OFF = 0x600000
M_OFF = 0x620000
ST_OFF = 0x700000
WS_SIZE = 0x800000
SENT = 0xFFFFFFFF

RING = 0
STAGE, SROW = 65536, 1040
SS = STAGE + 64 * SROW
PS = SS + 2048
PK = PS + 4096
OP = PK + 1024
FLAGS = OP + 16384
FL_LAND, FL_CONS, FL_S, FL_O, FL_P, FL_E, FL_F, FL_RST = FLAGS, FLAGS + 16, FLAGS + 32, FLAGS + 48, FLAGS + 64, FLAGS + 80, FLAGS + 84, FLAGS + 88
FL_TOT, FL_LPROG, FL_W3, FL_TQ = FLAGS + 4, FLAGS + 8, FLAGS + 92, FLAGS + 96
WS3, WQ = STAGE, STAGE + 4096
LDS_BYTES = FLAGS + 256

class A:
    def __init__(self): self.l = []
    def __call__(self, s):
        for x in s.split("\n"):
            x = x.strip()
            if x: self.l.append(("" if x.endswith(":") else "  ") + x)
    def text(self): return "\n".join(self.l)

def vr(b, n=1): return f"v{b}" if n == 1 else f"v[{b}:{b+n-1}]"

def gen(W=20, stamps=False, guard=False, dbgtime=False, kflags="nt", vflags="nt", eflags="", dmadepth=8, msleep=16, hprio=0, csleep=1, noef=False, nocons=False, lin=False, nohelp=False, nochk=False, nopub=False, fakecons=False, fakehelp=False, noread=False, nocomp=False, hmode=0, hsleep=None, htest=None, swapkv=False, early=True, outflags='', NP=0, D=1, WE=0, NE=0, l0=False, lprio=0):
    a = A()
    N = KNAME
    NS3 = 8 - NP
    U0 = 56 + NS3
    NTK = 16 * NP
    lab = lambda s: f"L_{s}"
    def sleep(n):
        g = f"\ns_add_u32 s97, s97, 1\ns_cmp_gt_u32 s97, 0x40000\ns_cbranch_scc1 {lab('done')}" if guard else ""
        return f"s_sleep {n}" + g
    def srd(base, plo, phi, size):
        a(f"s_mov_b32 s{base}, s{plo}\ns_and_b32 s{base+1}, s{phi}, 0xffff\ns_mov_b32 s{base+2}, {size}\ns_mov_b32 s{base+3}, 0x20000")
    def stamp(idx, vst):
        if stamps:
            a(f"s_memrealtime s[98:99]\ns_waitcnt lgkmcnt(0)\nv_writelane_b32 v{vst}, s98, {idx}")
    def stamp_s(sidx, add, vst):
        if stamps:
            a(f"s_add_u32 s96, {sidx}, {add}\ns_mov_b32 m0, s96\ns_memrealtime s[98:99]\ns_waitcnt lgkmcnt(0)\nv_writelane_b32 v{vst}, s98, m0")
    def stamp_store(vst, vtmp, slot):
        if stamps:
            a(f"s_lshl_b32 s98, s2, 3\ns_add_u32 s98, s98, {slot}\ns_lshl_b32 s98, s98, 8\ns_add_u32 s98, s98, {ST_OFF}")
            a(f"v_mbcnt_lo_u32_b32 v{vtmp}, -1, 0\nv_mbcnt_hi_u32_b32 v{vtmp}, -1, v{vtmp}\nv_lshlrev_b32 v{vtmp}, 2, v{vtmp}")
            a(f"buffer_store_dword v{vst}, v{vtmp}, s[32:35], s98 offen\ns_waitcnt vmcnt(0)")
    def ldswait(tag, vaddr, vtmp, target, slp, cmp="s_cmp_ge_i32"):
        a(f"{lab(tag)}:\nds_read_b32 v{vtmp}, v{vaddr}\ns_waitcnt lgkmcnt(0)\nv_readfirstlane_b32 s50, v{vtmp}\n{cmp} s50, {target}\ns_cbranch_scc1 {lab(tag+'_ok')}\n{sleep(slp)}\ns_branch {lab(tag)}\n{lab(tag+'_ok')}:")
    def one_lane(instr):
        a(f"s_mov_b64 exec, 1\n{instr}\ns_mov_b64 exec, -1")
    COL0 = "s_mov_b32 s46, 0x00010001\ns_mov_b32 s47, 0x00010001\ns_mov_b64 exec, s[46:47]"

    a(f"{N}:")
    a(f"s_cmp_ge_u32 s2, 256\ns_cbranch_scc1 {lab('done')}")
    if stamps: a("s_memrealtime s[92:93]")
    a("s_load_dwordx16 s[4:19], s[0:1], 0")
    if guard: a("s_mov_b32 s97, 0")
    a("v_lshrrev_b32 v1, 6, v0\nv_and_b32 v2, 63, v0")
    a("s_and_b32 s3, s2, 7\ns_lshr_b32 s24, s2, 3")
    a("v_readfirstlane_b32 s20, v1")
    a("s_and_b32 s21, s24, 15\ns_lshr_b32 s24, s24, 4\ns_lshl_b32 s24, s24, 3\ns_add_u32 s22, s24, s3\ns_lshl_b32 s23, s21, 2")
    if l0:
        a(f"s_cmp_eq_u32 s20, 5\ns_cbranch_scc1 {lab('helper')}")
        a(f"s_sub_u32 s20, s20, 1\ns_cbranch_scc0 {lab('consumer')}")
    else:
        a(f"s_cmp_lt_u32 s20, 4\ns_cbranch_scc1 {lab('consumer')}")
        a(f"s_cmp_eq_u32 s20, 5\ns_cbranch_scc1 {lab('helper')}")
    if lprio: a(f"s_setprio {lprio}")

    vL16 = 3; vLand = 4; vT = 5; vC = 8; vST = 12
    a(f"v_lshlrev_b32 v{vL16}, 4, v2\nv_mov_b32 v{vLand}, {FL_LAND}\nv_mov_b32 v6, {FL_CONS}")
    a("s_lshl_b32 s40, s23, 22\ns_lshl_b32 s41, s22, 18\ns_add_u32 s40, s40, s41")
    if stamps: a(f"v_mov_b32 v{vST}, 0")
    a("s_waitcnt lgkmcnt(0)")
    if stamps: a(f"v_writelane_b32 v{vST}, s92, 11")
    stamp(12, vST)
    srd(24, 6, 7, 0x10000000)
    srd(32, 18, 19, WS_SIZE)
    EARLY = 16 if early else 0
    for p in range(0, EARLY, 4):
        a(f"s_mov_b32 m0, {p*1024}\ns_add_u32 s48, s40, {p*1024}")
        for pp in range(4):
            a(f"buffer_load_dwordx4 v{vL16}, s[24:27], s48 offen offset:{pp*1024} {kflags} lds")
    stamp(13, vST)
    a("s_barrier")
    stamp(0, vST)
    if stamps: a("s_waitcnt vmcnt(15)")
    stamp(14, vST)
    if stamps: a("s_memtime s[62:63]\ns_waitcnt lgkmcnt(0)")
    a(f"s_mov_b32 s41, 0\ns_mov_b32 s60, 0\nds_read_b128 {vr(vC,4)}, v6")
    if early:
        a("s_mov_b32 s42, s40\ns_mov_b32 s43, 0\ns_mov_b32 s44, 0\ns_mov_b32 s45, -1")
        a(f"s_branch {lab('lkg2')}")
    def unit_body(tag, flags, W=W):
        for grp in range(4):
            if grp == 2 and tag == "lk": a(f"{lab('lkg2')}:")
            if nocons and not fakecons or nochk: a(f"s_branch {lab(f'{tag}c{grp}_ok2')}")
            a(f"s_waitcnt lgkmcnt(0)\nv_readfirstlane_b32 s50, v{vC+grp}\ns_cmp_ge_i32 s50, s45\ns_cbranch_scc1 {lab(f'{tag}c{grp}_ok')}")
            a(f"{lab(f'{tag}c{grp}')}:\nds_read_b128 {vr(vC,4)}, v6\ns_waitcnt lgkmcnt(0)\nv_readfirstlane_b32 s50, v{vC+grp}\ns_cmp_ge_i32 s50, s45\ns_cbranch_scc1 {lab(f'{tag}c{grp}_ok')}\ns_add_u32 s60, s60, 1\n{sleep(1)}\ns_branch {lab(f'{tag}c{grp}')}\n{lab(f'{tag}c{grp}_ok')}:")
            a(f"ds_read_b128 {vr(vC,4)}, v6\n{lab(f'{tag}c{grp}_ok2')}:")
            for half in range(2):
                off = grp * 8192 + half * 4096
                a(f"s_add_u32 m0, s43, {off}\ns_add_u32 s48, s42, {off}")
                for pp in range(4):
                    p = grp * 8 + half * 4 + pp
                    a(f"s_waitcnt vmcnt({W-1})")
                    if (p - W + 1) % 8 == 0:
                        a(f"s_add_i32 s51, s44, {p-W+1}\nv_mov_b32 v{vT}, s51")
                        one_lane(f"ds_write_b32 v{vLand}, v{vT}")
                    a(f"buffer_load_dwordx4 v{vL16}, s[24:27], s48 offen offset:{pp*1024} {flags} lds")
    def unit_consts():
        a("s_and_b32 s43, s41, 1\ns_lshl_b32 s43, s43, 15\ns_lshl_b32 s44, s41, 5\ns_sub_u32 s45, s41, 1")
    def lprog():
        a(f"v_mov_b32 v{vT}, s41")
        one_lane(f"ds_write_b32 v{vLand}, v{vT} offset:8")
    def loader_loop(tag, flags, uend, W=W):
        a(f"{lab(tag)}:")
        a("s_lshr_b32 s42, s41, 3\ns_and_b32 s42, s42, 3\ns_lshl_b32 s42, s42, 22\ns_and_b32 s43, s41, 7\ns_lshl_b32 s43, s43, 15\ns_add_u32 s42, s42, s43\ns_add_u32 s42, s42, s40")
        if lin: a("s_and_b32 s42, s41, 31\ns_lshl_b32 s42, s42, 15\ns_lshl_b32 s43, s2, 20\ns_add_u32 s42, s42, s43")
        unit_consts()
        if NP and tag in ("lv", "lw"): lprog()
        unit_body(tag, flags, W)
        if stamps:
            a(f"s_and_b32 s49, s41, 7\ns_cmp_eq_u32 s49, 7\ns_cbranch_scc0 {lab(tag+'nost')}\ns_lshr_b32 s49, s41, 3")
            stamp_s("s49", 1, vST)
            a(f"{lab(tag+'nost')}:")
        a(f"s_add_u32 s41, s41, 1\ns_cmp_lt_u32 s41, {uend}\ns_cbranch_scc1 {lab(tag)}")
    if swapkv: a("s_mov_b32 s24, s8\ns_and_b32 s25, s9, 0xffff")
    loader_loop("lk", kflags, 32)
    if swapkv: a("s_mov_b32 s24, s6\ns_and_b32 s25, s7, 0xffff")
    else: a("s_mov_b32 s24, s8\ns_and_b32 s25, s9, 0xffff")
    WL = W
    if NE:
        loader_loop("lv", vflags, U0 - NE)
        loader_loop("lw", vflags, U0, WE)
        WL = WE
    else:
        loader_loop("lv", vflags, U0)
    if NP:
        lg = NP.bit_length() - 1
        a(f"s_mov_b32 s52, 0\ns_add_u32 s53, s23, 3\ns_lshl_b32 s53, s53, 22\ns_add_u32 s53, s53, {NS3 << 15}")
        a(f"s_mul_i32 s54, s21, {NTK*256}\ns_add_u32 s54, s54, {W2_OFF}")
        a(f"{lab('lp')}:")
        lprog()
        a(f"s_and_b32 s49, s52, 3\ns_lshl_b32 s49, s49, 3\ns_add_u32 s49, s49, {FL_TQ}\nv_mov_b32 v7, s49\ns_add_u32 s52, s52, 1")
        a(f"{lab('lptk')}:\nds_read_b64 v[14:15], v7\ns_waitcnt lgkmcnt(0)\nv_readfirstlane_b32 s55, v14\nv_readfirstlane_b32 s56, v15\ns_cmp_eq_u32 s56, s52\ns_cbranch_scc1 {lab('lptk_ok')}\n{sleep(1)}\ns_branch {lab('lptk')}\n{lab('lptk_ok')}:")
        a(f"s_cmp_ge_u32 s55, {NTK}\ns_cbranch_scc1 {lab('lpend')}")
        a(f"s_lshr_b32 s42, s55, {lg}\ns_lshl_b32 s42, s42, 18\ns_and_b32 s43, s55, {NP-1}\ns_lshl_b32 s43, s43, 15\ns_add_u32 s42, s42, s43\ns_add_u32 s42, s42, s53")
        a(f"s_lshl_b32 s48, s55, 8\ns_add_u32 s48, s48, s54\ns_and_b32 s43, s41, 3\ns_lshl_b32 s43, s43, 8\ns_add_u32 m0, s43, {WQ}")
        a(f"s_mov_b64 exec, 0xffff\nbuffer_load_dwordx4 v{vL16}, s[32:35], s48 offen sc1 lds\ns_mov_b64 exec, -1")
        unit_consts()
        a(f"ds_read_b128 {vr(vC,4)}, v6")
        unit_body("lq", vflags, WL)
        a(f"s_add_u32 s41, s41, 1\ns_branch {lab('lp')}")
        a(f"{lab('lpend')}:")
        a(f"v_mov_b32 v{vT}, s41")
        one_lane(f"ds_write_b32 v{vLand}, v{vT} offset:4")
        a("s_lshl_b32 s44, s41, 5")
        for o in range(-((WL - 1) // 8) * 8, 1, 8):
            a(f"s_waitcnt vmcnt({-o})\ns_add_i32 s51, s44, {o}\nv_mov_b32 v{vT}, s51")
            one_lane(f"ds_write_b32 v{vLand}, v{vT}")
        if stamps: a(f"v_writelane_b32 v{vST}, s41, 28")
    else:
        tot = 2048
        for tgt in range(((tot - WL + 1) + 7) // 8 * 8, tot + 1, 8):
            a(f"s_waitcnt vmcnt({tot - tgt})\nv_mov_b32 v{vT}, {tgt}")
            one_lane(f"ds_write_b32 v{vLand}, v{vT}")
    a("s_waitcnt lgkmcnt(0)")
    stamp(9, vST)
    if stamps: a(f"s_memtime s[64:65]\ns_waitcnt lgkmcnt(0)\ns_sub_u32 s64, s64, s62\nv_writelane_b32 v{vST}, s64, 29")
    if stamps: a(f"s_getreg_b32 s49, hwreg(HW_REG_XCC_ID)\nv_writelane_b32 v{vST}, s49, 30\nv_writelane_b32 v{vST}, s60, 31")
    stamp_store(vST, vT, 2)
    a(f"s_branch {lab('done')}")

    a(f"{lab('consumer')}:")
    R = 4; Qr = 36; EF = 52; ACC = 116; X = 132; TMP = 140; BB = 148; W4 = 156
    vRdK = 160; vRdV = 161; vSa = 162; vBa = 163; vPsa = 164; vWs = 165; vOa = 166; vLand = 167; vCons = 168; vT = 169; vA = 170
    vOne = 171; vFl = 172; vST = 173; vG16 = 174; vWs0 = 175; vT2 = 3
    Aa = X; DD = ACC
    a(f"v_and_b32 v{vT}, 31, v2\nv_lshlrev_b32 v{vT}, 4, v{vT}\ns_lshl_b32 s41, s23, 9")
    a("s_waitcnt lgkmcnt(0)")
    srd(36, 4, 5, 32768)
    for g in range(4):
        a(f"buffer_load_dwordx4 {vr(Qr+4*g,4)}, v{vT}, s[36:39], s41 offen offset:{g*512}")
    srd(32, 18, 19, WS_SIZE)
    a(f"s_lshl_b32 s40, s20, 13")
    a(f"v_lshlrev_b32 v{vRdK}, 4, v2\nv_add_u32 v{vRdK}, s40, v{vRdK}")
    a(f"v_lshrrev_b32 v{vG16}, 4, v2\nv_lshlrev_b32 v{vRdV}, 11, v{vG16}\nv_and_b32 v{vT}, 15, v2\nv_lshlrev_b32 v{vT}, 4, v{vT}\nv_add_u32 v{vRdV}, v{vRdV}, v{vT}\nv_add_u32 v{vRdV}, s40, v{vRdV}")
    a(f"v_lshlrev_b32 v{vG16}, 4, v{vG16}")
    a(f"s_lshl_b32 s42, s20, 9\ns_add_u32 s42, s42, {SS}")
    a(f"v_and_b32 v{vSa}, 16, v2\nv_lshrrev_b32 v{vSa}, 2, v{vSa}\nv_and_b32 v{vT}, 8, v2\nv_add_u32 v{vSa}, v{vSa}, v{vT}")
    a(f"v_and_b32 v{vT}, 4, v2\nv_lshlrev_b32 v{vT}, 2, v{vT}\nv_add_u32 v{vSa}, v{vSa}, v{vT}")
    a(f"v_lshrrev_b32 v{vT}, 5, v2\nv_lshlrev_b32 v{vT}, 1, v{vT}\nv_add_u32 v{vSa}, v{vSa}, v{vT}\nv_add_u32 v{vSa}, s42, v{vSa}")
    a(f"v_and_b32 v{vT}, 1, v2\nv_lshlrev_b32 v{vBa}, 8, v{vT}\nv_add_u32 v{vBa}, v{vBa}, v{vG16}\nv_add_u32 v{vBa}, s42, v{vBa}")
    a(f"v_add_u32 v{vWs0}, s42, v{vG16}")
    a(f"s_lshl_b32 s43, s20, 8\ns_add_u32 s43, s43, {PS}\nv_add_u32 v{vPsa}, s43, v{vG16}")
    a(f"v_lshrrev_b32 v{vOa}, 5, v2\nv_lshlrev_b32 v{vOa}, 9, v{vOa}\nv_and_b32 v{vT}, 15, v2\nv_lshlrev_b32 v{vT}, 5, v{vT}\nv_add_u32 v{vOa}, v{vOa}, v{vT}")
    a(f"v_and_b32 v{vT}, 16, v2\nv_lshrrev_b32 v{vT}, 2, v{vT}\nv_add_u32 v{vOa}, v{vOa}, v{vT}\ns_lshl_b32 s43, s20, 10\ns_add_u32 s43, s43, {OP}\nv_add_u32 v{vOa}, s43, v{vOa}")
    a(f"v_mov_b32 v{vLand}, {FL_LAND}\ns_lshl_b32 s43, s20, 2\ns_add_u32 s43, s43, {FL_CONS}\nv_mov_b32 v{vCons}, s43\nv_mov_b32 v{vOne}, 1")
    a("s_mov_b32 s55, 0xffff0000")
    if stamps: a(f"v_mov_b32 v{vST}, 0")
    a("s_barrier")
    if nocons: a(f"s_branch {lab('done')}")
    stamp(0, vST)
    a("s_waitcnt vmcnt(0)")
    a("s_mov_b32 s41, 0\ns_lshl_b32 s44, s20, 3\ns_add_u32 s44, s44, 8")

    def unit_head(tag, vbase):
        ldswait(tag, vLand, vT, "s44", csleep)
        a(f"s_and_b32 s45, s41, 1\ns_lshl_b32 s45, s45, 15\nv_add_u32 v{vA}, s45, v{vbase}")
    def signal_consumed():
        a(f"s_add_u32 s45, s41, 1\nv_mov_b32 v{vT}, s45")
        one_lane(f"ds_write_b32 v{vCons}, v{vT}")

    a(f"{lab('kunit')}:")
    unit_head("kw", vRdK)
    for t in range(8 if not noread else 0): a(f"ds_read_b128 {vr(R+4*t,4)}, v{vA} offset:{t*1024}")
    for t in range(8):
        a(f"s_waitcnt lgkmcnt({7-t})")
        if t == 7: signal_consumed()
        if noread or nocomp: continue
        r = R + 4 * t
        a(f"v_dot2_f32_bf16 v{Aa+t}, v{r}, v{Qr}, 0")
        for i in range(1, 4): a(f"v_dot2_f32_bf16 v{Aa+t}, v{r+i}, v{Qr+i}, v{Aa+t}")
    a("s_nop 0")
    for p in range(4): a(f"v_permlane16_swap_b32 v{Aa+2*p}, v{Aa+2*p+1}")
    for p in range(4): a(f"v_add_f32 v{TMP+p}, v{Aa+2*p}, v{Aa+2*p+1}")
    c0, c1, d = TMP + 4, TMP + 5, TMP + 6
    a(f"v_add_f32_dpp v{c0}, v{TMP}, v{TMP} row_ror:8 row_mask:0xf bank_mask:0x3")
    a(f"v_add_f32_dpp v{c0}, v{TMP+1}, v{TMP+1} row_ror:8 row_mask:0xf bank_mask:0xc")
    a(f"v_add_f32_dpp v{c1}, v{TMP+2}, v{TMP+2} row_ror:8 row_mask:0xf bank_mask:0x3")
    a(f"v_add_f32_dpp v{c1}, v{TMP+3}, v{TMP+3} row_ror:8 row_mask:0xf bank_mask:0xc")
    a("s_nop 0")
    a(f"v_add_f32_dpp v{d}, v{c0}, v{c0} row_half_mirror row_mask:0xf bank_mask:0x5")
    a(f"v_add_f32_dpp v{d}, v{c1}, v{c1} row_half_mirror row_mask:0xf bank_mask:0xa")
    a("s_nop 1")
    a(f"v_add_f32_dpp v{d}, v{d}, v{d} quad_perm:[1,0,3,2] row_mask:0xf bank_mask:0xf")
    a("s_nop 1")
    a(f"v_add_f32_dpp v{d}, v{d}, v{d} quad_perm:[2,3,0,1] row_mask:0xf bank_mask:0xf")
    a(f"v_cvt_pk_bf16_f32 v{c0}, v{d}, v{d}")
    a(f"s_and_b32 s45, s41, 7\ns_lshl_b32 s46, s45, 5\nv_add_u32 v{vT}, s46, v{vSa}")
    a(f"v_lshlrev_b32 v{c1}, 16, v{c0}")
    a(f"ds_write_b16 v{vT}, v{c0}")
    a(f"v_sub_f32 v{c1}, v{d}, v{c1}")
    a(f"v_cvt_pk_bf16_f32 v{TMP}, v{c1}, v{c1}")
    a(f"ds_write_b16 v{vT}, v{TMP} offset:256")
    a(f"s_cmp_eq_u32 s45, 7\ns_cbranch_scc0 {lab('knoend')}")
    a(f"s_cmp_eq_u32 s41, 7\ns_cbranch_scc0 {lab('noE')}")
    a(f"v_mov_b32 v{vFl}, {FL_E}")
    ldswait("wE", vFl, vT, "1", 2)
    a(f"v_and_b32 v{vT}, 15, v2\nv_mul_u32_u24 v{vA}, {SROW}, v{vT}\nv_lshrrev_b32 v{vT}, 5, v2\nv_lshlrev_b32 v{vT}, 7, v{vT}\nv_add_u32 v{vA}, v{vA}, v{vT}")
    a(f"v_and_b32 v{vT}, 16, v2\nv_add_u32 v{vA}, v{vA}, v{vT}\ns_lshl_b32 s45, s20, 5\ns_add_u32 s45, s45, {STAGE}\nv_add_u32 v{vA}, s45, v{vA}")
    for tl in range(4):
        for ks in range(4):
            a(f"ds_read_b128 {vr(EF+16*tl+4*ks,4)}, v{vA} offset:{tl*16*SROW+ks*256}")
        a("s_waitcnt lgkmcnt(4)")
    a(f"{lab('noE')}:")
    a("s_waitcnt lgkmcnt(0)")
    for ks in range(4): a(f"ds_read_b128 {vr(R+4*ks,4)}, v{vBa} offset:{ks*64}")
    for ks in range(4):
        a(f"s_waitcnt lgkmcnt({3-ks})")
        for tl in range(4):
            c = "0" if ks == 0 else vr(DD+4*tl, 4)
            a(f"v_mfma_f32_16x16x32_bf16 {vr(DD+4*tl,4)}, {vr(EF+16*tl+4*ks,4)}, {vr(R+4*ks,4)}, {c}")
    a(f"s_lshr_b32 s45, s41, 3\ns_lshl_b32 s48, s45, 10\nv_add_u32 v{vA}, s48, v{vPsa}\ns_lshl_b32 s48, s45, 2\ns_add_u32 s48, s48, {FL_S}\nv_mov_b32 v{vFl}, s48")
    a("s_nop 4")
    for i in range(16):
        a(f"v_add_f32_dpp v{DD+i}, v{DD+i}, v{DD+i} quad_perm:[1,0,3,2] row_mask:0xf bank_mask:0xf")
    a(COL0)
    for tl in range(4): a(f"ds_write_b128 v{vA}, {vr(DD+4*tl,4)} offset:{tl*64}")
    a("s_mov_b64 exec, -1\ns_waitcnt lgkmcnt(0)")
    one_lane(f"ds_add_u32 v{vFl}, v{vOne}")
    for i in range(12): a(f"v_mov_b32 v{Qr+i}, v{Qr+4+i}")
    stamp_s("s45", 1, vST)
    a(f"{lab('knoend')}:")
    a(f"s_add_u32 s41, s41, 1\ns_add_u32 s44, s44, 32\ns_cmp_lt_u32 s41, 32\ns_cbranch_scc1 {lab('kunit')}")

    a(f"v_mov_b32 v{vFl}, {FL_F}")
    ldswait("wF", vFl, vT, "1", 2)
    a(f"v_and_b32 v{vT}, 15, v2\nv_lshrrev_b32 v{vT}, 2, v{vT}\nv_lshrrev_b32 v{vA}, 4, v2\nv_lshl_add_u32 v{vA}, v{vA}, 3, v{vT}\nv_mul_u32_u24 v{vA}, {SROW}, v{vA}")
    a(f"v_and_b32 v{vT}, 3, v2\nv_lshlrev_b32 v{vT}, 3, v{vT}\nv_add_u32 v{vA}, v{vA}, v{vT}\ns_lshl_b32 s45, s20, 5\ns_add_u32 s45, s45, {STAGE}\nv_add_u32 v{vA}, s45, v{vA}")
    n = 0
    for uu in range(8):
        for ks in range(2):
            for hf in range(2):
                a(f"ds_read_b64_tr_b16 {vr(EF+(uu*2+ks)*4+2*hf,2)}, v{vA} offset:{(32*ks+4*hf)*SROW+uu*128}")
                n += 1
                if n % 8 == 0: a("s_waitcnt lgkmcnt(4)")
    a("s_waitcnt lgkmcnt(0)")
    for i in range(16): a(f"v_mov_b32 v{ACC+i}, 0")
    stamp(5, vST)

    def w_tiles(pk_off_sgpr_or_imm, uus, dst_addr, offs):
        a(f"v_and_b32 v{vT}, 1, v2\nv_lshlrev_b32 v{vT}, 7, v{vT}\nv_add_u32 v{vT}, v{vT}, v{vG16}\nv_add_u32 v{vT}, {pk_off_sgpr_or_imm}, v{vT}")
        a(f"ds_read_b128 {vr(BB,4)}, v{vT}\nds_read_b128 {vr(BB+4,4)}, v{vT} offset:64\ns_waitcnt lgkmcnt(0)")
        for n, uu in enumerate(uus):
            a(f"v_mfma_f32_16x16x32_bf16 {vr(R+4*n,4)}, {vr(EF+uu*8,4)}, {vr(BB,4)}, 0")
        if len(uus) < 4: a("s_nop 7")
        for n, uu in enumerate(uus):
            a(f"v_mfma_f32_16x16x32_bf16 {vr(R+4*n,4)}, {vr(EF+uu*8+4,4)}, {vr(BB+4,4)}, {vr(R+4*n,4)}")
        a("s_nop 7\ns_nop 1")
        for i in range(4 * len(uus)):
            a(f"v_add_f32_dpp v{R+i}, v{R+i}, v{R+i} quad_perm:[1,0,3,2] row_mask:0xf bank_mask:0xf")
        a(COL0)
        for n, uu in enumerate(uus): a(f"ds_write_b128 v{dst_addr}, {vr(R+4*n,4)} offset:{offs[n]}")
        a("s_mov_b64 exec, -1")
    def v_body():
        for i in range(4 if not noread else 0):
            for hf in range(2):
                a(f"ds_read_b128 {vr(R+4*(2*i+hf),4)}, v{vA} offset:{i*512+hf*256}")
        for k in range(8):
            i, hf = k >> 1, k & 1
            a(f"s_waitcnt lgkmcnt({7-k})")
            if k == 7: signal_consumed()
            if noread or nocomp: continue
            r = R + 4 * k
            for e in range(4):
                a(f"v_lshlrev_b32 v{X+2*e}, 16, v{r+e}\nv_and_b32 v{X+2*e+1}, s55, v{r+e}")
            wp = W4 + (i & ~1)
            sel = "op_sel_hi:[1,0,1]" if i % 2 == 0 else "op_sel:[0,1,0] op_sel_hi:[1,1,1]"
            for e in range(4):
                ac = ACC + 8 * hf + 2 * e
                a(f"v_pk_fma_f32 {vr(ac,2)}, {vr(X+2*e,2)}, {vr(wp,2)}, {vr(ac,2)} {sel}")
    a("s_mov_b32 s49, 0")
    a(f"{lab('vhead')}:")
    a(f"s_lshl_b32 s48, s49, 2\ns_add_u32 s48, s48, {FL_P}\nv_mov_b32 v{vFl}, s48")
    ldswait("wP", vFl, vT, "1", 2)
    if NP:
        a(f"s_cmp_eq_u32 s49, 2\ns_cbranch_scc0 {lab('now3')}")
        a(f"s_lshl_b32 s48, s20, 6\ns_add_u32 s48, s48, {WS3}\nv_add_u32 v{vA}, s48, v{vG16}")
        w_tiles(PK + 3 * 256, list(range(NS3, 8)), vA, [n * 256 for n in range(NP)])
        a(f"v_mov_b32 v{vFl}, {FL_W3}\ns_waitcnt lgkmcnt(0)")
        one_lane(f"ds_add_u32 v{vFl}, v{vOne}")
        a(f"{lab('now3')}:")
        if NS3 == 0:
            a(f"s_cmp_eq_u32 s49, 3\ns_cbranch_scc1 {lab('vpool')}")
    a(f"s_lshl_b32 s48, s49, 8\ns_add_u32 s48, s48, {PK}")
    w_tiles("s48", list(range(8)), vWs0, [uu * 64 for uu in range(8)])
    a(f"v_mov_b32 v{vWs}, v{vWs0}\ns_waitcnt lgkmcnt(0)")
    a(f"{lab('vunit')}:")
    unit_head("vw", vRdV)
    a(f"ds_read_b128 {vr(W4,4)}, v{vWs}")
    v_body()
    a(f"v_add_u32 v{vWs}, 64, v{vWs}")
    a(f"s_and_b32 s45, s41, 7\ns_add_u32 s41, s41, 1\ns_add_u32 s44, s44, 32")
    if NP and NS3:
        a(f"s_cmp_eq_u32 s41, {U0}\ns_cbranch_scc1 {lab('vpool')}")
    a(f"s_cmp_eq_u32 s45, 7\ns_cbranch_scc0 {lab('vunit')}")
    if NP:
        a(f"s_branch {lab('vhend')}")
        a(f"{lab('vpool')}:")
        a(f"s_lshl_b32 s48, s20, 6\ns_add_u32 s48, s48, {WQ}\nv_add_u32 v{vWs0}, s48, v{vG16}")
        a(f"{lab('vpw')}:\nds_read_b64 v[{X}:{X+1}], v{vLand}\ns_waitcnt lgkmcnt(0)\nv_readfirstlane_b32 s50, v{X}\nv_readfirstlane_b32 s51, v{X+1}")
        a(f"s_cmp_ge_i32 s50, s44\ns_cbranch_scc1 {lab('vpw_ok')}")
        a(f"s_cmp_eq_u32 s51, 0\ns_cbranch_scc1 {lab('vpw_sl')}\ns_cmp_ge_u32 s41, s51\ns_cbranch_scc1 {lab('vhend')}")
        a(f"{lab('vpw_sl')}:\n{sleep(csleep)}\ns_branch {lab('vpw')}\n{lab('vpw_ok')}:")
        a(f"s_and_b32 s45, s41, 1\ns_lshl_b32 s45, s45, 15\nv_add_u32 v{vA}, s45, v{vRdV}")
        a(f"s_and_b32 s45, s41, 3\ns_lshl_b32 s45, s45, 8\nv_add_u32 v{vWs}, s45, v{vWs0}")
        a(f"ds_read_b128 {vr(W4,4)}, v{vWs}")
        v_body()
        a(f"s_add_u32 s41, s41, 1\ns_add_u32 s44, s44, 32\ns_branch {lab('vpw')}")
    a(f"{lab('vhend')}:")
    for e in range(8): a(f"v_permlane32_swap_b32 v{ACC+e}, v{ACC+8+e}")
    for e in range(8): a(f"v_add_f32 v{X+e}, v{ACC+e}, v{ACC+8+e}")
    a(f"s_lshl_b32 s48, s49, 12\nv_add_u32 v{vA}, s48, v{vOa}\ns_lshl_b32 s48, s49, 2\ns_add_u32 s48, s48, {FL_O}\nv_mov_b32 v{vFl}, s48")
    for q in range(4): a(f"v_permlane16_swap_b32 v{X+2*q}, v{X+2*q+1}")
    for q in range(4): a(f"v_add_f32 v{TMP+q}, v{X+2*q}, v{X+2*q+1}")
    for q in range(4): a(f"ds_write_b32 v{vA}, v{TMP+q} offset:{8*q}")
    for i in range(16): a(f"v_mov_b32 v{ACC+i}, 0")
    a("s_waitcnt lgkmcnt(0)")
    one_lane(f"ds_add_u32 v{vFl}, v{vOne}")
    stamp_s("s49", 6, vST)
    a(f"s_add_u32 s49, s49, 1\ns_cmp_lt_u32 s49, 4\ns_cbranch_scc1 {lab('vhead')}")
    srd(36, 14, 15, 32768)
    a(f"s_lshl_b32 s45, s20, 2\ns_add_u32 s45, s45, {FL_O}\nv_mov_b32 v{vFl}, s45")
    a(f"v_lshlrev_b32 v{vA}, 4, v2\ns_lshl_b32 s45, s20, 12\ns_add_u32 s45, s45, {OP}\nv_add_u32 v{vT2}, s45, v{vA}")
    a("s_add_u32 s44, s23, s20")
    a(f"s_lshl_b32 s45, s44, 14\ns_add_u32 s45, s45, {O_OFF}\ns_lshl_b32 s46, s22, 10\ns_add_u32 s46, s46, s45")
    a(f"s_lshl_b32 s47, s21, 8\ns_lshl_b32 s48, s20, 2\ns_add_u32 s47, s47, s48\ns_add_u32 s47, s47, {C_OFF + 16}")
    ldswait("wof", vFl, vT, "4", 1)
    for w in range(4): a(f"ds_read_b128 {vr(R+4*w,4)}, v{vT2} offset:{w*1024}")
    a(f"v_mov_b32 v{vT}, 0\nv_mov_b32 v{vFl}, 1")
    a("s_waitcnt lgkmcnt(0)")
    for i in range(4): a(f"v_add_f32 v{R+i}, v{R+i}, v{R+4+i}\nv_add_f32 v{R+8+i}, v{R+8+i}, v{R+12+i}")
    for i in range(4): a(f"v_add_f32 v{R+i}, v{R+i}, v{R+8+i}")
    a(f"buffer_store_dwordx4 {vr(R,4)}, v{vA}, s[32:35], s46 offen sc1\ns_waitcnt vmcnt(0)")
    one_lane(f"buffer_atomic_add v{vFl}, v{vT}, s[32:35], s47 offen sc0")
    a(f"s_waitcnt vmcnt(0)\nv_readfirstlane_b32 s50, v{vFl}")
    stamp(10, vST)
    a(f"s_cmp_eq_u32 s50, 15\ns_cbranch_scc0 {lab('cend')}")
    GB = 4
    for jj in range(16):
        a(f"buffer_load_dwordx4 {vr(GB+4*jj,4)}, v{vA}, s[32:35], s45 offen offset:{(jj%4)*1024} sc1")
        if jj % 4 == 3 and jj < 15: a("s_add_u32 s45, s45, 4096")
    a(f"v_lshlrev_b32 v{vT}, 3, v2\ns_lshl_b32 s45, s44, 9\ns_waitcnt vmcnt(0)")
    for st in (8, 4, 2, 1):
        for k in range(st):
            for i in range(4): a(f"v_add_f32 v{GB+4*k+i}, v{GB+4*k+i}, v{GB+4*(k+st)+i}")
    a(f"v_cvt_pk_bf16_f32 v{GB+4}, v{GB}, v{GB+1}\nv_cvt_pk_bf16_f32 v{GB+5}, v{GB+2}, v{GB+3}")
    a(f"buffer_store_dwordx2 {vr(GB+4,2)}, v{vT}, s[36:39], s45 offen {outflags}")
    a(f"{lab('cend')}:")
    if dbgtime:
        a(f"s_waitcnt vmcnt(0)\ns_memrealtime s[98:99]\ns_waitcnt lgkmcnt(0)\nv_mov_b32 v{vT}, s98\nv_mov_b32 v{vFl}, 0")
        one_lane(f"global_atomic_umax v{vFl}, v{vT}, s[16:17] offset:4")
    if stamps:
        a("s_waitcnt vmcnt(0)")
        stamp(11, vST)
        a(f"s_cmp_eq_u32 s20, 3\ns_cbranch_scc0 {lab('done')}")
        stamp_store(vST, vT, 0)
    a(f"s_branch {lab('done')}")

    a(f"{lab('helper')}:")
    if hprio: a(f"s_setprio {hprio}")
    vL16 = 3; vZ = 4; vOne = 5; vL4 = 10; vP = 13; vT1 = 14; vT2 = 15; vFl = 18; vST = 19; vOr = 20; vPsr = 21; vMo = 22
    AA = 48
    a(f"v_lshlrev_b32 v{vL4}, 2, v2\nv_mov_b32 v{vZ}, 0\nv_add_u32 v{vT1}, {FLAGS}, v{vL4}\nds_write_b32 v{vT1}, v{vZ}")
    a(f"v_lshlrev_b32 v{vL16}, 4, v2\nv_mov_b32 v{vOne}, 1")
    if dbgtime: a("s_memrealtime s[98:99]")
    a("s_waitcnt lgkmcnt(0)\ns_barrier")
    if fakehelp:
        a(f"v_mov_b32 v{vT1}, {FL_P}\nv_mov_b32 v24, 1\nv_mov_b32 v25, 1\nv_mov_b32 v26, 1\nv_mov_b32 v27, 1\nds_write_b128 v{vT1}, v[24:27]\nds_write_b128 v{vT1}, v[24:27] offset:16\ns_waitcnt lgkmcnt(0)\ns_branch {lab('done')}")
    if fakecons: a(f"v_mov_b32 v{vT1}, {FL_CONS}\nv_mov_b32 v24, 1000\nv_mov_b32 v25, 1000\nv_mov_b32 v26, 1000\nv_mov_b32 v27, 1000\nds_write_b128 v{vT1}, v[24:27]\ns_waitcnt lgkmcnt(0)")
    if htest:
        srd(32, 18, 19, WS_SIZE)
        a(f"v_mov_b32 v{vFl}, {FL_LAND}\ns_mov_b32 s42, 200\ns_lshl_b32 s46, s2, 10\ns_add_u32 s46, s46, {O_OFF}\ns_lshr_b32 s47, s2, 2\ns_lshl_b32 s47, s47, 8\ns_add_u32 s47, s47, {C_OFF}")
        a(f"s_lshr_b32 s45, s2, 4\ns_lshl_b32 s45, s45, 14\ns_add_u32 s45, s45, {O_OFF}")
        a(f"{lab('ht')}:")
        ldswait("htw", vFl, vT1, "s42", 16)
        for op in htest.split("+"):
            if op == "st1k": a(f"buffer_store_dwordx4 {vr(AA,4)}, v{vL16}, s[32:35], s46 offen sc1\ns_waitcnt vmcnt(0)")
            if op == "st1kp": a(f"buffer_store_dwordx4 {vr(AA,4)}, v{vL16}, s[32:35], s46 offen\ns_waitcnt vmcnt(0)")
            if op == "st1knt": a(f"buffer_store_dwordx4 {vr(AA,4)}, v{vL16}, s[32:35], s46 offen sc1 nt\ns_waitcnt vmcnt(0)")
            if op == "st256": a(f"buffer_store_dword v{AA}, v{vL4}, s[32:35], s46 offen sc1\ns_waitcnt vmcnt(0)")
            if op == "at":
                one_lane(f"buffer_atomic_add v{vOne}, v{vZ}, s[32:35], s47 offen offset:8 sc0")
                a(f"s_waitcnt vmcnt(0)\nv_mov_b32 v{vOne}, 1")
            if op == "ld16":
                for jj in range(16):
                    a(f"buffer_load_dwordx4 {vr(AA+4*jj,4)}, v{vL16}, s[32:35], s45 offen offset:{(jj%4)*1024} sc1")
                a("s_waitcnt vmcnt(0)")
            if op == "ld1": a(f"buffer_load_dword v{AA+8}, v{vL4}, s[32:35], s46 offen sc1\ns_waitcnt vmcnt(0)")
            if op == "st16x256":
                for m in range(16): a(f"buffer_store_dword v{AA}, v{vL4}, s[32:35], s45 offen offset:{m*256} sc1")
        a(f"s_add_u32 s42, s42, 256\ns_cmp_lt_u32 s42, 2048\ns_cbranch_scc1 {lab('ht')}\ns_branch {lab('done')}")
    if nocons or nohelp: a(f"s_branch {lab('done')}")
    if dbgtime:
        a(f"s_not_b32 s98, s98\nv_mov_b32 v{vT1}, s98")
        one_lane(f"global_atomic_umax v{vZ}, v{vT1}, s[16:17] offset:8")
    srd(24, 10, 11, 0x100000)
    srd(28, 12, 13, 0x100000)
    srd(32, 18, 19, WS_SIZE)
    srd(36, 14, 15, 32768)
    if stamps: a(f"v_mov_b32 v{vST}, 0")
    stamp(0, vST)
    def dma(tag, srdname):
        if noef or hmode == 2:
            a("s_waitcnt vmcnt(0)")
            return
        a(f"s_mov_b32 s40, {STAGE}\ns_lshl_b32 s41, s22, 10\ns_mov_b32 s43, 64\n{lab(tag)}:")
        a(f"s_mov_b32 m0, s40\ns_add_u32 s40, s40, {SROW}\nbuffer_load_dwordx4 v{vL16}, {srdname}, s41 offen {eflags} lds")
        a(f"s_add_u32 s41, s41, 16384\ns_waitcnt vmcnt({dmadepth-1})\ns_sub_u32 s43, s43, 1\ns_cmp_lg_u32 s43, 0\ns_cbranch_scc1 {lab(tag)}")
        a("s_waitcnt vmcnt(0)")
    a(f"s_lshl_b32 s58, s21, 8\ns_add_u32 s58, s58, {C_OFF}")
    a(f"s_lshl_b32 s59, s23, 8\ns_add_u32 s59, s59, {M_OFF}")
    a(f"s_cmp_lg_u32 s22, 0\ns_cbranch_scc1 {lab('noreset')}")
    for i in range(4): a(f"v_mov_b32 v{AA+i}, 0\nv_mov_b32 v{AA+4+i}, -1")
    a(f"s_mov_b64 exec, 3\nbuffer_store_dwordx4 {vr(AA,4)}, v{vL16}, s[32:35], s58 offen sc1\ns_mov_b64 exec, -1")
    a(f"buffer_store_dwordx4 {vr(AA+4,4)}, v{vL16}, s[32:35], s59 offen sc1")
    a(f"s_lshl_b32 s46, s21, 4\nv_mov_b32 v{vT1}, s46\ns_waitcnt vmcnt(0)")
    one_lane(f"global_store_dword v{vT1}, v{vOne}, s[16:17] sc1")
    a(f"{lab('noreset')}:")
    dma("edma", "s[24:27]")
    a(f"v_mov_b32 v{vFl}, {FL_E}\nds_write_b32 v{vFl}, v{vOne}")
    stamp(1, vST)
    vSr = 21; vL8 = 23
    a(f"v_add_u32 v{vOr}, {OP}, v{vL16}\nv_lshlrev_b32 v{vL8}, 3, v2")
    a(f"v_lshrrev_b32 v{vSr}, 4, v2\nv_and_b32 v{vSr}, 1, v{vSr}\nv_lshlrev_b32 v{vSr}, 10, v{vSr}\nv_and_b32 v{vT1}, 15, v2\nv_lshlrev_b32 v{vT1}, 4, v{vT1}\nv_add_u32 v{vSr}, v{vSr}, v{vT1}\nv_add_u32 v{vSr}, {PS}, v{vSr}")
    a(f"v_and_b32 v{vMo}, 1, v2\nv_lshlrev_b32 v{vMo}, 7, v{vMo}\nv_lshrrev_b32 v{vT1}, 1, v2\nv_lshlrev_b32 v{vT1}, 2, v{vT1}\nv_add_u32 v{vMo}, v{vMo}, v{vT1}")

    def wave_reduce(op, v, t1, t2):
        for ror in (8, 4, 2, 1):
            a(f"s_nop 1\n{op}_dpp v{v}, v{v}, v{v} row_ror:{ror} row_mask:0xf bank_mask:0xf")
        a(f"v_mov_b32 v{t1}, v{v}\nv_mov_b32 v{t2}, v{v}\ns_nop 1\nv_permlane16_swap_b32 v{t1}, v{t2}\n{op} v{v}, v{t1}, v{t2}")
        a(f"s_nop 0\nv_mov_b32 v{t1}, v{v}\nv_mov_b32 v{t2}, v{v}\ns_nop 1\nv_permlane32_swap_b32 v{t1}, v{t2}\n{op} v{v}, v{t1}, v{t2}")
    def wait_s(g):
        a(f"v_mov_b32 v{vFl}, {FL_S+4*g}")
        ldswait(f"s{g}w", vFl, vT1, "4", hsleep or 4)
    def s_publish(rd):
        t = f"r{rd}"
        if hmode in (1, 2, 4): return
        for w in range(4): a(f"ds_read_b128 {vr(AA+4*w,4)}, v{vSr} offset:{rd*2048+w*256}")
        a(f"s_lshl_b32 s45, s21, 1\ns_add_u32 s45, s45, {rd}\ns_lshl_b32 s45, s45, 13\ns_add_u32 s45, s45, {P_OFF}\ns_lshl_b32 s46, s22, 9\ns_add_u32 s46, s46, s45")
        a("s_waitcnt lgkmcnt(0)")
        for i in range(4): a(f"v_add_f32 v{AA+i}, v{AA+i}, v{AA+4+i}\nv_add_f32 v{AA+8+i}, v{AA+8+i}, v{AA+12+i}")
        for i in range(4): a(f"v_add_f32 v{AA+i}, v{AA+i}, v{AA+8+i}")
        a(f"s_mov_b32 exec_hi, 0\nbuffer_store_dwordx4 {vr(AA,4)}, v{vL16}, s[32:35], s46 offen sc1\ns_mov_b64 exec, -1")
        a(f"v_mov_b32 v{vT2}, 1")
        a("s_waitcnt vmcnt(0)")
        one_lane(f"buffer_atomic_add v{vT2}, v{vZ}, s[32:35], s58 offen offset:{4*rd} sc0")
        stamp(2 + 4 * rd, vST)
        a(f"s_waitcnt vmcnt(0)\nv_readfirstlane_b32 s50, v{vT2}")
        a(f"s_cmp_eq_u32 s50, 15\ns_cbranch_scc0 {lab(t+'_nl')}")
        for jj in range(16):
            if jj % 8 == 0 and jj: a("s_add_u32 s45, s45, 4096")
            for h in range(2):
                a(f"buffer_load_dword v{AA+16*h+jj}, v{vL4}, s[32:35], s45 offen offset:{(jj%8)*512+h*256} sc1")
        a("s_waitcnt vmcnt(0)")
        for h in range(2):
            B0 = AA + 16 * h
            T = AA + 40
            for st in (8, 4, 2, 1):
                for i in range(st): a(f"v_add_f32 v{B0+i}, v{B0+i}, v{B0+i+st}")
            a(f"v_mul_f32 v{vP}, 0x3db8aa3b, v{B0}")
            a(f"v_mov_b32 v{T+1}, v{vP}")
            wave_reduce("v_max_f32", T + 1, T + 2, T + 3)
            a(f"v_sub_f32 v{vP}, v{vP}, v{T+1}\nv_exp_f32 v{vP}, v{vP}\ns_nop 0\nv_mov_b32 v{T+1}, v{vP}")
            wave_reduce("v_add_f32", T + 1, T + 2, T + 3)
            a(f"v_rcp_f32 v{T+1}, v{T+1}\ns_nop 0\nv_mul_f32 v{vP}, v{vP}, v{T+1}")
            a(f"v_cvt_pk_bf16_f32 v{T}, v{vP}, v{vP}\nv_lshlrev_b32 v{T}, 16, v{T}\nv_sub_f32 v{T+1}, v{vP}, v{T}\ns_nop 1")
            a(f"v_mov_b32_dpp v{T+2}, v{vP} quad_perm:[1,0,3,2] row_mask:0xf bank_mask:0xf")
            a(f"v_mov_b32_dpp v{T+3}, v{T+1} quad_perm:[1,0,3,2] row_mask:0xf bank_mask:0xf")
            a(f"v_cvt_pk_bf16_f32 v{T+4}, v{vP}, v{T+2}\nv_cvt_pk_bf16_f32 v{T+5}, v{T+3}, v{T+1}")
            a(f"v_and_b32 v{T+6}, 1, v2\nv_cmp_eq_u32 vcc, 1, v{T+6}\ns_nop 1\nv_cndmask_b32 v{T+4}, v{T+4}, v{T+5}, vcc")
            a(f"v_mov_b32 v{T+5}, 0x7fc07fc0\nv_cmp_eq_u32 vcc, -1, v{T+4}\ns_nop 1\nv_cndmask_b32 v{T+8+h}, v{T+4}, v{T+5}, vcc")
        for h in range(2):
            a(f"buffer_store_dword v{AA+48+h}, v{vMo}, s[32:35], s59 offen offset:{(2*rd+h)*256} sc1")
        a(f"{lab(t+'_nl')}:")
        stamp(3 + 4 * rd, vST)
    def p_fetch(rd):
        t = f"p{rd}"
        if hmode in (1, 2, 4):
            a(f"v_mov_b32 v{vFl}, {FL_P+8*rd}\nds_write_b32 v{vFl}, v{vOne}\nds_write_b32 v{vFl}, v{vOne} offset:4")
            return
        a(f"{lab(t)}:\nbuffer_load_dwordx2 {vr(AA,2)}, v{vL8}, s[32:35], s59 offen offset:{rd*512} sc1\ns_waitcnt vmcnt(0)\nv_cmp_eq_u32 vcc, -1, v{AA}\nv_cmp_eq_u32 s[46:47], -1, v{AA+1}\ns_nop 1\ns_or_b64 vcc, vcc, s[46:47]\ns_cmp_eq_u64 vcc, 0\ns_cbranch_scc1 {lab(t+'_ok')}\n{sleep(msleep)}\ns_branch {lab(t)}\n{lab(t+'_ok')}:")
        a(f"v_add_u32 v{vT1}, {PK+rd*512}, v{vL8}\nds_write_b64 v{vT1}, {vr(AA,2)}\nv_mov_b32 v{vFl}, {FL_P+8*rd}\ns_waitcnt lgkmcnt(0)\nds_write_b32 v{vFl}, v{vOne}\nds_write_b32 v{vFl}, v{vOne} offset:4")
        stamp(4 + 4 * rd, vST)

    wait_s(0)
    dma("fdma", "s[28:31]")
    a(f"v_mov_b32 v{vFl}, {FL_F}\nds_write_b32 v{vFl}, v{vOne}")
    stamp(18, vST)
    if hmode not in (1, 2, 4):
        a(f"s_lshl_b32 s46, s21, 4\nv_mov_b32 v{vT1}, s46")
        a(f"{lab('wgo')}:\nglobal_load_dword v{vT2}, v{vT1}, s[16:17] sc1\ns_waitcnt vmcnt(0)\nv_readfirstlane_b32 s50, v{vT2}\ns_cmp_ge_u32 s50, 1\ns_cbranch_scc1 {lab('wgo_ok')}\n{sleep(32)}\ns_branch {lab('wgo')}\n{lab('wgo_ok')}:")
    wait_s(1); s_publish(0)
    wait_s(2); p_fetch(0)
    wait_s(3); s_publish(1)
    a(f"v_mov_b32 v{vFl}, {FL_O}")
    ldswait("wo0", vFl, vT1, "4", hsleep or 8)
    p_fetch(1)
    if NP:
        a(f"v_mov_b32 v{vFl}, {FL_W3}")
        ldswait("ww3", vFl, vT1, "4", 8)
        a(f"s_mul_i32 s45, s21, {NTK*256}\ns_mul_i32 s46, s22, {NP*256}\ns_add_u32 s45, s45, s46\ns_add_u32 s45, s45, {W2_OFF}")
        nst = (NP * 256 + 1023) // 1024
        for n in range(nst):
            a(f"v_add_u32 v{vT1}, {WS3 + n*1024}, v{vL16}\nds_read_b128 {vr(AA+4*n,4)}, v{vT1}")
        a("s_waitcnt lgkmcnt(0)")
        if NP * 256 < 1024: a(f"s_mov_b32 exec_lo, {hex((1 << (NP*16)) - 1) if NP*16 < 32 else -1}\ns_mov_b32 exec_hi, 0")
        for n in range(nst):
            a(f"buffer_store_dwordx4 {vr(AA+4*n,4)}, v{vL16}, s[32:35], s45 offen offset:{n*1024} sc1")
        a(f"s_mov_b64 exec, -1\nv_mov_b32 v{vT2}, 1\ns_waitcnt vmcnt(0)")
        one_lane(f"buffer_atomic_add v{vT2}, v{vZ}, s[32:35], s58 offen offset:8 sc0")
        a(f"s_waitcnt vmcnt(0)\nv_readfirstlane_b32 s50, v{vT2}\ns_cmp_eq_u32 s50, 15\ns_cbranch_scc1 {lab('wall_ok')}")
        a(f"{lab('wall')}:\n{sleep(32)}\nbuffer_load_dword v{vT2}, v{vZ}, s[32:35], s58 offen offset:8 sc1\ns_waitcnt vmcnt(0)\nv_readfirstlane_b32 s50, v{vT2}\ns_cmp_ge_u32 s50, 16\ns_cbranch_scc0 {lab('wall')}\n{lab('wall_ok')}:")
        stamp(10, vST)
        a(f"s_mov_b32 s42, 0\nv_mov_b32 v{vFl}, {FL_LPROG}")
        a(f"{lab('tk')}:\ns_add_u32 s43, s42, {U0 - D}")
        ldswait("tkw", vFl, vT1, "s43", 2)
        a(f"v_mov_b32 v{vT2}, 1")
        one_lane(f"buffer_atomic_add v{vT2}, v{vZ}, s[32:35], s58 offen offset:12 sc0")
        a(f"s_and_b32 s43, s42, 3\ns_lshl_b32 s43, s43, 3\ns_add_u32 s43, s43, {FL_TQ}\nv_mov_b32 v{vT1}, s43\ns_add_u32 s42, s42, 1\nv_mov_b32 v{AA+1}, s42\ns_waitcnt vmcnt(0)\nv_mov_b32 v{AA}, v{vT2}")
        one_lane(f"ds_write_b64 v{vT1}, {vr(AA,2)}")
        a(f"v_readfirstlane_b32 s50, v{vT2}\ns_cmp_lt_u32 s50, {NTK}\ns_cbranch_scc1 {lab('tk')}")
        stamp(11, vST)
    if stamps:
        a("s_waitcnt vmcnt(0)")
        stamp(24, vST)
        stamp_store(vST, vT1, 1)
    a(f"{lab('done')}:\ns_endpgm")

    head = f"""; Linformer low-rank-projection attention, decode step (B=4 H=16 Sq=1 Skv=8192 Dh=256 R=64), gfx950.
; @launch grid=(256,1,1) block=(384,1,1) lds={LDS_BYTES}
.amdgcn_target "amdgcn-amd-amdhsa--gfx950"
.text
.globl {N}
.p2align 8
.type {N},@function
"""
    tail = f"""
.section .rodata,"a"
.p2align 6
.amdhsa_kernel {N}
  .amdhsa_next_free_vgpr 176
  .amdhsa_next_free_sgpr 102
  .amdhsa_accum_offset 176
  .amdhsa_group_segment_fixed_size 0
  .amdhsa_kernarg_size 64
  .amdhsa_float_denorm_mode_32 3
  .amdhsa_float_denorm_mode_16_64 3
  .amdhsa_user_sgpr_count 2
  .amdhsa_user_sgpr_kernarg_segment_ptr 1
  .amdhsa_system_sgpr_workgroup_id_x 1
.end_amdhsa_kernel
"""
    return head + a.text() + tail

if __name__ == "__main__":
    out = sys.argv[1]
    kw = eval("dict(%s)" % (sys.argv[2] if len(sys.argv) > 2 else ""))
    open(out, "w").write(gen(**kw))
    import build
    print(build.build(out), "lds", LDS_BYTES)
```

```python
import sys

KNAME = "standalone__low_rank_proj_linformer__decode_kernel"

P_OFF = 0x000000
W2_OFF = 0x200000
O_OFF = 0x400000
C_OFF = 0x600000
M_OFF = 0x620000
ST_OFF = 0x700000
WS_SIZE = 0x800000
SENT = 0xFFFFFFFF

RING = 0
STAGE, SROW = 65536, 1040
SS = STAGE + 64 * SROW
PS = SS + 2048
PK = PS + 4096
OP = PK + 1024
FLAGS = OP + 16384
FL_LAND, FL_CONS, FL_S, FL_O, FL_P, FL_E, FL_F, FL_RST = FLAGS, FLAGS + 16, FLAGS + 32, FLAGS + 48, FLAGS + 64, FLAGS + 80, FLAGS + 84, FLAGS + 88
FL_TOT, FL_LPROG, FL_W3, FL_TQ = FLAGS + 4, FLAGS + 8, FLAGS + 92, FLAGS + 96
WS3, WQ = STAGE, STAGE + 4096
LDS_BYTES = FLAGS + 256

class A:
    def __init__(self): self.l = []
    def __call__(self, s):
        for x in s.split("\n"):
            x = x.strip()
            if x: self.l.append(("" if x.endswith(":") else "  ") + x)
    def text(self): return "\n".join(self.l)

def vr(b, n=1): return f"v{b}" if n == 1 else f"v[{b}:{b+n-1}]"

def gen(W=20, stamps=False, guard=False, dbgtime=False, kflags="nt", vflags="nt", eflags="", dmadepth=8, msleep=16, hprio=0, csleep=1, noef=False, nocons=False, lin=False, nohelp=False, nochk=False, nopub=False, fakecons=False, fakehelp=False, noread=False, nocomp=False, hmode=0, hsleep=None, htest=None, swapkv=False, early=True, outflags='', NP=0, D=1, WE=0, NE=0, l0=False, lprio=0, inter=False, rot=None):
    JS, US = (15, 19) if inter else (18, 15)
    a = A()
    N = KNAME
    NS3 = 8 - NP
    U0 = 56 + NS3
    NTK = 16 * NP
    lab = lambda s: f"L_{s}"
    def sleep(n):
        g = f"\ns_add_u32 s97, s97, 1\ns_cmp_gt_u32 s97, 0x100000\ns_cbranch_scc1 {lab('done')}" if guard else ""
        return f"s_sleep {n}" + g
    def srd(base, plo, phi, size):
        a(f"s_mov_b32 s{base}, s{plo}\ns_and_b32 s{base+1}, s{phi}, 0xffff\ns_mov_b32 s{base+2}, {size}\ns_mov_b32 s{base+3}, 0x20000")
    def stamp(idx, vst):
        if stamps:
            a(f"s_memrealtime s[98:99]\ns_waitcnt lgkmcnt(0)\nv_writelane_b32 v{vst}, s98, {idx}")
    def stamp_s(sidx, add, vst):
        if stamps:
            a(f"s_add_u32 s96, {sidx}, {add}\ns_mov_b32 m0, s96\ns_memrealtime s[98:99]\ns_waitcnt lgkmcnt(0)\nv_writelane_b32 v{vst}, s98, m0")
    def stamp_store(vst, vtmp, slot):
        if stamps:
            a(f"s_lshl_b32 s98, s2, 3\ns_add_u32 s98, s98, {slot}\ns_lshl_b32 s98, s98, 8\ns_add_u32 s98, s98, {ST_OFF}")
            a(f"v_mbcnt_lo_u32_b32 v{vtmp}, -1, 0\nv_mbcnt_hi_u32_b32 v{vtmp}, -1, v{vtmp}\nv_lshlrev_b32 v{vtmp}, 2, v{vtmp}")
            a(f"buffer_store_dword v{vst}, v{vtmp}, s[32:35], s98 offen\ns_waitcnt vmcnt(0)")
    def ldswait(tag, vaddr, vtmp, target, slp, cmp="s_cmp_ge_i32"):
        a(f"{lab(tag)}:\nds_read_b32 v{vtmp}, v{vaddr}\ns_waitcnt lgkmcnt(0)\nv_readfirstlane_b32 s50, v{vtmp}\n{cmp} s50, {target}\ns_cbranch_scc1 {lab(tag+'_ok')}\n{sleep(slp)}\ns_branch {lab(tag)}\n{lab(tag+'_ok')}:")
    def one_lane(instr):
        a(f"s_mov_b64 exec, 1\n{instr}\ns_mov_b64 exec, -1")
    COL0 = "s_mov_b32 s46, 0x00010001\ns_mov_b32 s47, 0x00010001\ns_mov_b64 exec, s[46:47]"

    a(f"{N}:")
    a(f"s_cmp_ge_u32 s2, 256\ns_cbranch_scc1 {lab('done')}")
    if stamps: a("s_memrealtime s[92:93]")
    a("s_load_dwordx16 s[4:19], s[0:1], 0")
    if guard: a("s_mov_b32 s97, 0")
    a("v_lshrrev_b32 v1, 6, v0\nv_and_b32 v2, 63, v0")
    a("s_and_b32 s3, s2, 7\ns_lshr_b32 s24, s2, 3")
    a("v_readfirstlane_b32 s20, v1")
    a("s_and_b32 s21, s24, 15\ns_lshr_b32 s24, s24, 4\ns_lshl_b32 s24, s24, 3\ns_add_u32 s22, s24, s3\ns_lshl_b32 s23, s21, 2")
    if l0:
        a(f"s_cmp_eq_u32 s20, 5\ns_cbranch_scc1 {lab('helper')}")
        a(f"s_sub_u32 s20, s20, 1\ns_cbranch_scc0 {lab('consumer')}")
    else:
        a(f"s_cmp_lt_u32 s20, 4\ns_cbranch_scc1 {lab('consumer')}")
        a(f"s_cmp_eq_u32 s20, 5\ns_cbranch_scc1 {lab('helper')}")
    if lprio: a(f"s_setprio {lprio}")

    vL16 = 3; vLand = 4; vT = 5; vC = 8; vST = 12
    a("; ---------------------------------------------------------------- loader")
    a(f"v_lshlrev_b32 v{vL16}, 4, v2\nv_mov_b32 v{vLand}, {FL_LAND}\nv_mov_b32 v6, {FL_CONS}")
    a(f"s_lshl_b32 s40, s23, 22\ns_lshl_b32 s41, s22, {JS}\ns_add_u32 s40, s40, s41")
    if stamps: a(f"v_mov_b32 v{vST}, 0")
    a("s_waitcnt lgkmcnt(0)")
    if stamps: a(f"v_writelane_b32 v{vST}, s92, 11")
    stamp(12, vST)
    srd(24, 6, 7, 0x10000000)
    srd(32, 18, 19, WS_SIZE)
    EARLY = 16 if early else 0
    for p in range(0, EARLY, 4):
        a(f"s_mov_b32 m0, {p*1024}\ns_add_u32 s48, s40, {p*1024}")
        for pp in range(4):
            a(f"buffer_load_dwordx4 v{vL16}, s[24:27], s48 offen offset:{pp*1024} {kflags} lds")
    stamp(13, vST)
    a("s_barrier")
    stamp(0, vST)
    if stamps: a("s_waitcnt vmcnt(15)")
    stamp(14, vST)
    if stamps: a("s_memtime s[62:63]\ns_waitcnt lgkmcnt(0)")
    a(f"s_mov_b32 s41, 0\ns_mov_b32 s60, 0\nds_read_b128 {vr(vC,4)}, v6")
    if early:
        a("s_mov_b32 s42, s40\ns_mov_b32 s43, 0\ns_mov_b32 s44, 0\ns_mov_b32 s45, -1")
        a(f"s_branch {lab('lkg2')}")
    def unit_body(tag, flags, W=W):
        for grp in range(4):
            if grp == 2 and tag == "lk": a(f"{lab('lkg2')}:")
            if nocons and not fakecons or nochk: a(f"s_branch {lab(f'{tag}c{grp}_ok2')}")
            a(f"s_waitcnt lgkmcnt(0)\nv_readfirstlane_b32 s50, v{vC+grp}\ns_cmp_ge_i32 s50, s45\ns_cbranch_scc1 {lab(f'{tag}c{grp}_ok')}")
            a(f"{lab(f'{tag}c{grp}')}:\nds_read_b128 {vr(vC,4)}, v6\ns_waitcnt lgkmcnt(0)\nv_readfirstlane_b32 s50, v{vC+grp}\ns_cmp_ge_i32 s50, s45\ns_cbranch_scc1 {lab(f'{tag}c{grp}_ok')}\ns_add_u32 s60, s60, 1\n{sleep(1)}\ns_branch {lab(f'{tag}c{grp}')}\n{lab(f'{tag}c{grp}_ok')}:")
            a(f"ds_read_b128 {vr(vC,4)}, v6\n{lab(f'{tag}c{grp}_ok2')}:")
            for half in range(2):
                off = grp * 8192 + half * 4096
                a(f"s_add_u32 m0, s43, {off}\ns_add_u32 s48, s42, {off}")
                for pp in range(4):
                    p = grp * 8 + half * 4 + pp
                    a(f"s_waitcnt vmcnt({W-1})")
                    if (p - W + 1) % 8 == 0:
                        a(f"s_add_i32 s51, s44, {p-W+1}\nv_mov_b32 v{vT}, s51")
                        one_lane(f"ds_write_b32 v{vLand}, v{vT}")
                    a(f"buffer_load_dwordx4 v{vL16}, s[24:27], s48 offen offset:{pp*1024} {flags} lds")
    def unit_consts():
        a("s_and_b32 s43, s41, 1\ns_lshl_b32 s43, s43, 15\ns_lshl_b32 s44, s41, 5\ns_sub_u32 s45, s41, 1")
    def lprog():
        a(f"v_mov_b32 v{vT}, s41")
        one_lane(f"ds_write_b32 v{vLand}, v{vT} offset:8")
    def loader_loop(tag, flags, uend, W=W):
        a(f"{lab(tag)}:")
        a(f"s_lshr_b32 s42, s41, 3\ns_and_b32 s42, s42, 3\ns_lshl_b32 s42, s42, 22\ns_and_b32 s43, s41, 7\ns_lshl_b32 s43, s43, {US}\ns_add_u32 s42, s42, s43\ns_add_u32 s42, s42, s40")
        if lin: a("s_and_b32 s42, s41, 31\ns_lshl_b32 s42, s42, 15\ns_lshl_b32 s43, s2, 20\ns_add_u32 s42, s42, s43")
        if rot:
            ur = {'uj': 's22', 'ug': 's21', 'ujg': 's57', 'hg': None, 'hgujg': 's57', 'uj2': 's58'}[rot]
            a("s_add_u32 s57, s21, s22\ns_lshr_b32 s58, s22, 1")
            a("s_lshr_b32 s42, s41, 3")
            if rot.startswith('hg'): a("s_add_u32 s42, s42, s21")
            a("s_and_b32 s42, s42, 3\ns_lshl_b32 s42, s42, 22")
            if ur: a(f"s_add_u32 s43, s41, {ur}")
            else: a("s_mov_b32 s43, s41")
            a(f"s_and_b32 s43, s43, 7\ns_lshl_b32 s43, s43, {US}\ns_add_u32 s42, s42, s43\ns_add_u32 s42, s42, s40")
        unit_consts()
        if NP and tag in ("lv", "lw"): lprog()
        unit_body(tag, flags, W)
        if stamps:
            a(f"s_and_b32 s49, s41, 7\ns_cmp_eq_u32 s49, 7\ns_cbranch_scc0 {lab(tag+'nost')}\ns_lshr_b32 s49, s41, 3")
            stamp_s("s49", 1, vST)
            a(f"{lab(tag+'nost')}:")
        a(f"s_add_u32 s41, s41, 1\ns_cmp_lt_u32 s41, {uend}\ns_cbranch_scc1 {lab(tag)}")
    if swapkv: a("s_mov_b32 s24, s8\ns_and_b32 s25, s9, 0xffff")
    loader_loop("lk", kflags, 32)
    if swapkv: a("s_mov_b32 s24, s6\ns_and_b32 s25, s7, 0xffff")
    else: a("s_mov_b32 s24, s8\ns_and_b32 s25, s9, 0xffff")
    WL = W
    if NE:
        loader_loop("lv", vflags, U0 - NE)
        loader_loop("lw", vflags, U0, WE)
        WL = WE
    else:
        loader_loop("lv", vflags, U0)
    if NP:
        lg = NP.bit_length() - 1
        a(f"s_mov_b32 s52, 0\ns_add_u32 s53, s23, 3\ns_lshl_b32 s53, s53, 22\ns_add_u32 s53, s53, {NS3 << US}")
        a(f"s_mul_i32 s54, s21, {NTK*256}\ns_add_u32 s54, s54, {W2_OFF}")
        a(f"{lab('lp')}:")
        lprog()
        a(f"s_and_b32 s49, s52, 3\ns_lshl_b32 s49, s49, 3\ns_add_u32 s49, s49, {FL_TQ}\nv_mov_b32 v7, s49\ns_add_u32 s52, s52, 1")
        a(f"{lab('lptk')}:\nds_read_b64 v[14:15], v7\ns_waitcnt lgkmcnt(0)\nv_readfirstlane_b32 s55, v14\nv_readfirstlane_b32 s56, v15\ns_cmp_eq_u32 s56, s52\ns_cbranch_scc1 {lab('lptk_ok')}\n{sleep(1)}\ns_branch {lab('lptk')}\n{lab('lptk_ok')}:")
        a(f"s_cmp_ge_u32 s55, {NTK}\ns_cbranch_scc1 {lab('lpend')}")
        a(f"s_lshr_b32 s42, s55, {lg}\ns_lshl_b32 s42, s42, {JS}\ns_and_b32 s43, s55, {NP-1}\ns_lshl_b32 s43, s43, {US}\ns_add_u32 s42, s42, s43\ns_add_u32 s42, s42, s53")
        a(f"s_lshl_b32 s48, s55, 8\ns_add_u32 s48, s48, s54\ns_and_b32 s43, s41, 3\ns_lshl_b32 s43, s43, 8\ns_add_u32 m0, s43, {WQ}")
        a(f"s_mov_b64 exec, 0xffff\nbuffer_load_dwordx4 v{vL16}, s[32:35], s48 offen sc1 lds\ns_mov_b64 exec, -1")
        unit_consts()
        a(f"ds_read_b128 {vr(vC,4)}, v6")
        unit_body("lq", vflags, WL)
        a(f"s_add_u32 s41, s41, 1\ns_branch {lab('lp')}")
        a(f"{lab('lpend')}:")
        a(f"v_mov_b32 v{vT}, s41")
        one_lane(f"ds_write_b32 v{vLand}, v{vT} offset:4")
        a("s_lshl_b32 s44, s41, 5")
        for o in range(-((WL - 1) // 8) * 8, 1, 8):
            a(f"s_waitcnt vmcnt({-o})\ns_add_i32 s51, s44, {o}\nv_mov_b32 v{vT}, s51")
            one_lane(f"ds_write_b32 v{vLand}, v{vT}")
        if stamps: a(f"v_writelane_b32 v{vST}, s41, 28")
    else:
        tot = 2048
        for tgt in range(((tot - WL + 1) + 7) // 8 * 8, tot + 1, 8):
            a(f"s_waitcnt vmcnt({tot - tgt})\nv_mov_b32 v{vT}, {tgt}")
            one_lane(f"ds_write_b32 v{vLand}, v{vT}")
    a("s_waitcnt lgkmcnt(0)")
    stamp(9, vST)
    if stamps: a(f"s_memtime s[64:65]\ns_waitcnt lgkmcnt(0)\ns_sub_u32 s64, s64, s62\nv_writelane_b32 v{vST}, s64, 29")
    if stamps: a(f"s_getreg_b32 s49, hwreg(HW_REG_XCC_ID)\nv_writelane_b32 v{vST}, s49, 30\nv_writelane_b32 v{vST}, s60, 31")
    stamp_store(vST, vT, 2)
    a(f"s_branch {lab('done')}")

    a("; ---------------------------------------------------------------- consumers (s20 = 0..3)")
    a(f"{lab('consumer')}:")
    R = 4; Qr = 36; EF = 52; ACC = 116; X = 132; TMP = 140; BB = 148; W4 = 156
    vRdK = 160; vRdV = 161; vSa = 162; vBa = 163; vPsa = 164; vWs = 165; vOa = 166; vLand = 167; vCons = 168; vT = 169; vA = 170
    vOne = 171; vFl = 172; vST = 173; vG16 = 174; vWs0 = 175; vT2 = 3
    Aa = X; DD = ACC
    a(f"v_and_b32 v{vT}, 31, v2\nv_lshlrev_b32 v{vT}, 4, v{vT}\ns_lshl_b32 s41, s23, 9")
    a("s_waitcnt lgkmcnt(0)")
    srd(36, 4, 5, 32768)
    for g in range(4):
        a(f"buffer_load_dwordx4 {vr(Qr+4*g,4)}, v{vT}, s[36:39], s41 offen offset:{g*512}")
    srd(32, 18, 19, WS_SIZE)
    a(f"s_lshl_b32 s40, s20, 13")
    a(f"v_lshlrev_b32 v{vRdK}, 4, v2\nv_add_u32 v{vRdK}, s40, v{vRdK}")
    a(f"v_lshrrev_b32 v{vG16}, 4, v2\nv_lshlrev_b32 v{vRdV}, 11, v{vG16}\nv_and_b32 v{vT}, 15, v2\nv_lshlrev_b32 v{vT}, 4, v{vT}\nv_add_u32 v{vRdV}, v{vRdV}, v{vT}\nv_add_u32 v{vRdV}, s40, v{vRdV}")
    a(f"v_lshlrev_b32 v{vG16}, 4, v{vG16}")
    a(f"s_lshl_b32 s42, s20, 9\ns_add_u32 s42, s42, {SS}")
    a(f"v_and_b32 v{vSa}, 16, v2\nv_lshrrev_b32 v{vSa}, 2, v{vSa}\nv_and_b32 v{vT}, 8, v2\nv_add_u32 v{vSa}, v{vSa}, v{vT}")
    a(f"v_and_b32 v{vT}, 4, v2\nv_lshlrev_b32 v{vT}, 2, v{vT}\nv_add_u32 v{vSa}, v{vSa}, v{vT}")
    a(f"v_lshrrev_b32 v{vT}, 5, v2\nv_lshlrev_b32 v{vT}, 1, v{vT}\nv_add_u32 v{vSa}, v{vSa}, v{vT}\nv_add_u32 v{vSa}, s42, v{vSa}")
    a(f"v_and_b32 v{vT}, 1, v2\nv_lshlrev_b32 v{vBa}, 8, v{vT}\nv_add_u32 v{vBa}, v{vBa}, v{vG16}\nv_add_u32 v{vBa}, s42, v{vBa}")
    a(f"v_add_u32 v{vWs0}, s42, v{vG16}")
    a(f"s_lshl_b32 s43, s20, 8\ns_add_u32 s43, s43, {PS}\nv_add_u32 v{vPsa}, s43, v{vG16}")
    a(f"v_lshrrev_b32 v{vOa}, 5, v2\nv_lshlrev_b32 v{vOa}, 9, v{vOa}\nv_and_b32 v{vT}, 15, v2\nv_lshlrev_b32 v{vT}, 5, v{vT}\nv_add_u32 v{vOa}, v{vOa}, v{vT}")
    a(f"v_and_b32 v{vT}, 16, v2\nv_lshrrev_b32 v{vT}, 2, v{vT}\nv_add_u32 v{vOa}, v{vOa}, v{vT}\ns_lshl_b32 s43, s20, 10\ns_add_u32 s43, s43, {OP}\nv_add_u32 v{vOa}, s43, v{vOa}")
    a(f"v_mov_b32 v{vLand}, {FL_LAND}\ns_lshl_b32 s43, s20, 2\ns_add_u32 s43, s43, {FL_CONS}\nv_mov_b32 v{vCons}, s43\nv_mov_b32 v{vOne}, 1")
    a("s_mov_b32 s55, 0xffff0000")
    if stamps: a(f"v_mov_b32 v{vST}, 0")
    a("s_barrier")
    if nocons: a(f"s_branch {lab('done')}")
    stamp(0, vST)
    a("s_waitcnt vmcnt(0)")
    a("s_mov_b32 s41, 0\ns_lshl_b32 s44, s20, 3\ns_add_u32 s44, s44, 8")

    def unit_head(tag, vbase):
        ldswait(tag, vLand, vT, "s44", csleep)
        a(f"s_and_b32 s45, s41, 1\ns_lshl_b32 s45, s45, 15\nv_add_u32 v{vA}, s45, v{vbase}")
    def signal_consumed():
        a(f"s_add_u32 s45, s41, 1\nv_mov_b32 v{vT}, s45")
        one_lane(f"ds_write_b32 v{vCons}, v{vT}")

    a(f"{lab('kunit')}:")
    unit_head("kw", vRdK)
    for t in range(8 if not noread else 0): a(f"ds_read_b128 {vr(R+4*t,4)}, v{vA} offset:{t*1024}")
    for t in range(8):
        a(f"s_waitcnt lgkmcnt({7-t})")
        if t == 7: signal_consumed()
        if noread or nocomp: continue
        r = R + 4 * t
        a(f"v_dot2_f32_bf16 v{Aa+t}, v{r}, v{Qr}, 0")
        for i in range(1, 4): a(f"v_dot2_f32_bf16 v{Aa+t}, v{r+i}, v{Qr+i}, v{Aa+t}")
    a("s_nop 0")
    for p in range(4): a(f"v_permlane16_swap_b32 v{Aa+2*p}, v{Aa+2*p+1}")
    for p in range(4): a(f"v_add_f32 v{TMP+p}, v{Aa+2*p}, v{Aa+2*p+1}")
    c0, c1, d = TMP + 4, TMP + 5, TMP + 6
    a(f"v_add_f32_dpp v{c0}, v{TMP}, v{TMP} row_ror:8 row_mask:0xf bank_mask:0x3")
    a(f"v_add_f32_dpp v{c0}, v{TMP+1}, v{TMP+1} row_ror:8 row_mask:0xf bank_mask:0xc")
    a(f"v_add_f32_dpp v{c1}, v{TMP+2}, v{TMP+2} row_ror:8 row_mask:0xf bank_mask:0x3")
    a(f"v_add_f32_dpp v{c1}, v{TMP+3}, v{TMP+3} row_ror:8 row_mask:0xf bank_mask:0xc")
    a("s_nop 0")
    a(f"v_add_f32_dpp v{d}, v{c0}, v{c0} row_half_mirror row_mask:0xf bank_mask:0x5")
    a(f"v_add_f32_dpp v{d}, v{c1}, v{c1} row_half_mirror row_mask:0xf bank_mask:0xa")
    a("s_nop 1")
    a(f"v_add_f32_dpp v{d}, v{d}, v{d} quad_perm:[1,0,3,2] row_mask:0xf bank_mask:0xf")
    a("s_nop 1")
    a(f"v_add_f32_dpp v{d}, v{d}, v{d} quad_perm:[2,3,0,1] row_mask:0xf bank_mask:0xf")
    a(f"v_cvt_pk_bf16_f32 v{c0}, v{d}, v{d}")
    a(f"s_and_b32 s45, s41, 7\ns_lshl_b32 s46, s45, 5\nv_add_u32 v{vT}, s46, v{vSa}")
    a(f"v_lshlrev_b32 v{c1}, 16, v{c0}")
    a(f"ds_write_b16 v{vT}, v{c0}")
    a(f"v_sub_f32 v{c1}, v{d}, v{c1}")
    a(f"v_cvt_pk_bf16_f32 v{TMP}, v{c1}, v{c1}")
    a(f"ds_write_b16 v{vT}, v{TMP} offset:256")
    a(f"s_cmp_eq_u32 s45, 7\ns_cbranch_scc0 {lab('knoend')}")
    a(f"s_cmp_eq_u32 s41, 7\ns_cbranch_scc0 {lab('noE')}")
    a(f"v_mov_b32 v{vFl}, {FL_E}")
    ldswait("wE", vFl, vT, "1", 2)
    a(f"v_and_b32 v{vT}, 15, v2\nv_mul_u32_u24 v{vA}, {SROW}, v{vT}\nv_lshrrev_b32 v{vT}, 5, v2\nv_lshlrev_b32 v{vT}, 7, v{vT}\nv_add_u32 v{vA}, v{vA}, v{vT}")
    a(f"v_and_b32 v{vT}, 16, v2\nv_add_u32 v{vA}, v{vA}, v{vT}\ns_lshl_b32 s45, s20, 5\ns_add_u32 s45, s45, {STAGE}\nv_add_u32 v{vA}, s45, v{vA}")
    for tl in range(4):
        for ks in range(4):
            a(f"ds_read_b128 {vr(EF+16*tl+4*ks,4)}, v{vA} offset:{tl*16*SROW+ks*256}")
        a("s_waitcnt lgkmcnt(4)")
    a(f"{lab('noE')}:")
    a("s_waitcnt lgkmcnt(0)")
    for ks in range(4): a(f"ds_read_b128 {vr(R+4*ks,4)}, v{vBa} offset:{ks*64}")
    for ks in range(4):
        a(f"s_waitcnt lgkmcnt({3-ks})")
        for tl in range(4):
            c = "0" if ks == 0 else vr(DD+4*tl, 4)
            a(f"v_mfma_f32_16x16x32_bf16 {vr(DD+4*tl,4)}, {vr(EF+16*tl+4*ks,4)}, {vr(R+4*ks,4)}, {c}")
    a(f"s_lshr_b32 s45, s41, 3\ns_lshl_b32 s48, s45, 10\nv_add_u32 v{vA}, s48, v{vPsa}\ns_lshl_b32 s48, s45, 2\ns_add_u32 s48, s48, {FL_S}\nv_mov_b32 v{vFl}, s48")
    a("s_nop 4")
    for i in range(16):
        a(f"v_add_f32_dpp v{DD+i}, v{DD+i}, v{DD+i} quad_perm:[1,0,3,2] row_mask:0xf bank_mask:0xf")
    a(COL0)
    for tl in range(4): a(f"ds_write_b128 v{vA}, {vr(DD+4*tl,4)} offset:{tl*64}")
    a("s_mov_b64 exec, -1\ns_waitcnt lgkmcnt(0)")
    one_lane(f"ds_add_u32 v{vFl}, v{vOne}")
    for i in range(12): a(f"v_mov_b32 v{Qr+i}, v{Qr+4+i}")
    stamp_s("s45", 1, vST)
    a(f"{lab('knoend')}:")
    a(f"s_add_u32 s41, s41, 1\ns_add_u32 s44, s44, 32\ns_cmp_lt_u32 s41, 32\ns_cbranch_scc1 {lab('kunit')}")

    a(f"v_mov_b32 v{vFl}, {FL_F}")
    ldswait("wF", vFl, vT, "1", 2)
    a(f"v_and_b32 v{vT}, 15, v2\nv_lshrrev_b32 v{vT}, 2, v{vT}\nv_lshrrev_b32 v{vA}, 4, v2\nv_lshl_add_u32 v{vA}, v{vA}, 3, v{vT}\nv_mul_u32_u24 v{vA}, {SROW}, v{vA}")
    a(f"v_and_b32 v{vT}, 3, v2\nv_lshlrev_b32 v{vT}, 3, v{vT}\nv_add_u32 v{vA}, v{vA}, v{vT}\ns_lshl_b32 s45, s20, 5\ns_add_u32 s45, s45, {STAGE}\nv_add_u32 v{vA}, s45, v{vA}")
    n = 0
    for uu in range(8):
        for ks in range(2):
            for hf in range(2):
                a(f"ds_read_b64_tr_b16 {vr(EF+(uu*2+ks)*4+2*hf,2)}, v{vA} offset:{(32*ks+4*hf)*SROW+uu*128}")
                n += 1
                if n % 8 == 0: a("s_waitcnt lgkmcnt(4)")
    a("s_waitcnt lgkmcnt(0)")
    for i in range(16): a(f"v_mov_b32 v{ACC+i}, 0")
    stamp(5, vST)

    def w_tiles(pk_off_sgpr_or_imm, uus, dst_addr, offs):
        a(f"v_and_b32 v{vT}, 1, v2\nv_lshlrev_b32 v{vT}, 7, v{vT}\nv_add_u32 v{vT}, v{vT}, v{vG16}\nv_add_u32 v{vT}, {pk_off_sgpr_or_imm}, v{vT}")
        a(f"ds_read_b128 {vr(BB,4)}, v{vT}\nds_read_b128 {vr(BB+4,4)}, v{vT} offset:64\ns_waitcnt lgkmcnt(0)")
        for n, uu in enumerate(uus):
            a(f"v_mfma_f32_16x16x32_bf16 {vr(R+4*n,4)}, {vr(EF+uu*8,4)}, {vr(BB,4)}, 0")
        if len(uus) < 4: a("s_nop 7")
        for n, uu in enumerate(uus):
            a(f"v_mfma_f32_16x16x32_bf16 {vr(R+4*n,4)}, {vr(EF+uu*8+4,4)}, {vr(BB+4,4)}, {vr(R+4*n,4)}")
        a("s_nop 7\ns_nop 1")
        for i in range(4 * len(uus)):
            a(f"v_add_f32_dpp v{R+i}, v{R+i}, v{R+i} quad_perm:[1,0,3,2] row_mask:0xf bank_mask:0xf")
        a(COL0)
        for n, uu in enumerate(uus): a(f"ds_write_b128 v{dst_addr}, {vr(R+4*n,4)} offset:{offs[n]}")
        a("s_mov_b64 exec, -1")
    def v_body():
        for i in range(4 if not noread else 0):
            for hf in range(2):
                a(f"ds_read_b128 {vr(R+4*(2*i+hf),4)}, v{vA} offset:{i*512+hf*256}")
        for k in range(8):
            i, hf = k >> 1, k & 1
            a(f"s_waitcnt lgkmcnt({7-k})")
            if k == 7: signal_consumed()
            if noread or nocomp: continue
            r = R + 4 * k
            for e in range(4):
                a(f"v_lshlrev_b32 v{X+2*e}, 16, v{r+e}\nv_and_b32 v{X+2*e+1}, s55, v{r+e}")
            wp = W4 + (i & ~1)
            sel = "op_sel_hi:[1,0,1]" if i % 2 == 0 else "op_sel:[0,1,0] op_sel_hi:[1,1,1]"
            for e in range(4):
                ac = ACC + 8 * hf + 2 * e
                a(f"v_pk_fma_f32 {vr(ac,2)}, {vr(X+2*e,2)}, {vr(wp,2)}, {vr(ac,2)} {sel}")
    a("s_mov_b32 s49, 0")
    a(f"{lab('vhead')}:")
    a(f"s_lshl_b32 s48, s49, 2\ns_add_u32 s48, s48, {FL_P}\nv_mov_b32 v{vFl}, s48")
    ldswait("wP", vFl, vT, "1", 2)
    if NP:
        a(f"s_cmp_eq_u32 s49, 2\ns_cbranch_scc0 {lab('now3')}")
        a(f"s_lshl_b32 s48, s20, 6\ns_add_u32 s48, s48, {WS3}\nv_add_u32 v{vA}, s48, v{vG16}")
        w_tiles(PK + 3 * 256, list(range(NS3, 8)), vA, [n * 256 for n in range(NP)])
        a(f"v_mov_b32 v{vFl}, {FL_W3}\ns_waitcnt lgkmcnt(0)")
        one_lane(f"ds_add_u32 v{vFl}, v{vOne}")
        a(f"{lab('now3')}:")
        if NS3 == 0:
            a(f"s_cmp_eq_u32 s49, 3\ns_cbranch_scc1 {lab('vpool')}")
    a(f"s_lshl_b32 s48, s49, 8\ns_add_u32 s48, s48, {PK}")
    w_tiles("s48", list(range(8)), vWs0, [uu * 64 for uu in range(8)])
    a(f"v_mov_b32 v{vWs}, v{vWs0}\ns_waitcnt lgkmcnt(0)")
    a(f"{lab('vunit')}:")
    unit_head("vw", vRdV)
    a(f"ds_read_b128 {vr(W4,4)}, v{vWs}")
    v_body()
    a(f"v_add_u32 v{vWs}, 64, v{vWs}")
    a(f"s_and_b32 s45, s41, 7\ns_add_u32 s41, s41, 1\ns_add_u32 s44, s44, 32")
    if NP and NS3:
        a(f"s_cmp_eq_u32 s41, {U0}\ns_cbranch_scc1 {lab('vpool')}")
    a(f"s_cmp_eq_u32 s45, 7\ns_cbranch_scc0 {lab('vunit')}")
    if NP:
        a(f"s_branch {lab('vhend')}")
        a(f"{lab('vpool')}:")
        a(f"s_lshl_b32 s48, s20, 6\ns_add_u32 s48, s48, {WQ}\nv_add_u32 v{vWs0}, s48, v{vG16}")
        a(f"{lab('vpw')}:\nds_read_b64 v[{X}:{X+1}], v{vLand}\ns_waitcnt lgkmcnt(0)\nv_readfirstlane_b32 s50, v{X}\nv_readfirstlane_b32 s51, v{X+1}")
        a(f"s_cmp_ge_i32 s50, s44\ns_cbranch_scc1 {lab('vpw_ok')}")
        a(f"s_cmp_eq_u32 s51, 0\ns_cbranch_scc1 {lab('vpw_sl')}\ns_cmp_ge_u32 s41, s51\ns_cbranch_scc1 {lab('vhend')}")
        a(f"{lab('vpw_sl')}:\n{sleep(csleep)}\ns_branch {lab('vpw')}\n{lab('vpw_ok')}:")
        a(f"s_and_b32 s45, s41, 1\ns_lshl_b32 s45, s45, 15\nv_add_u32 v{vA}, s45, v{vRdV}")
        a(f"s_and_b32 s45, s41, 3\ns_lshl_b32 s45, s45, 8\nv_add_u32 v{vWs}, s45, v{vWs0}")
        a(f"ds_read_b128 {vr(W4,4)}, v{vWs}")
        v_body()
        a(f"s_add_u32 s41, s41, 1\ns_add_u32 s44, s44, 32\ns_branch {lab('vpw')}")
    a(f"{lab('vhend')}:")
    for e in range(8): a(f"v_permlane32_swap_b32 v{ACC+e}, v{ACC+8+e}")
    for e in range(8): a(f"v_add_f32 v{X+e}, v{ACC+e}, v{ACC+8+e}")
    a(f"s_lshl_b32 s48, s49, 12\nv_add_u32 v{vA}, s48, v{vOa}\ns_lshl_b32 s48, s49, 2\ns_add_u32 s48, s48, {FL_O}\nv_mov_b32 v{vFl}, s48")
    for q in range(4): a(f"v_permlane16_swap_b32 v{X+2*q}, v{X+2*q+1}")
    for q in range(4): a(f"v_add_f32 v{TMP+q}, v{X+2*q}, v{X+2*q+1}")
    for q in range(4): a(f"ds_write_b32 v{vA}, v{TMP+q} offset:{8*q}")
    for i in range(16): a(f"v_mov_b32 v{ACC+i}, 0")
    a("s_waitcnt lgkmcnt(0)")
    one_lane(f"ds_add_u32 v{vFl}, v{vOne}")
    stamp_s("s49", 6, vST)
    a(f"s_add_u32 s49, s49, 1\ns_cmp_lt_u32 s49, 4\ns_cbranch_scc1 {lab('vhead')}")
    srd(36, 14, 15, 32768)
    a(f"s_lshl_b32 s45, s20, 2\ns_add_u32 s45, s45, {FL_O}\nv_mov_b32 v{vFl}, s45")
    a(f"v_lshlrev_b32 v{vA}, 4, v2\ns_lshl_b32 s45, s20, 12\ns_add_u32 s45, s45, {OP}\nv_add_u32 v{vT2}, s45, v{vA}")
    a("s_add_u32 s44, s23, s20")
    a(f"s_lshl_b32 s45, s44, 14\ns_add_u32 s45, s45, {O_OFF}\ns_lshl_b32 s46, s22, 10\ns_add_u32 s46, s46, s45")
    a(f"s_lshl_b32 s47, s21, 8\ns_lshl_b32 s48, s20, 2\ns_add_u32 s47, s47, s48\ns_add_u32 s47, s47, {C_OFF + 16}")
    ldswait("wof", vFl, vT, "4", 1)
    for w in range(4): a(f"ds_read_b128 {vr(R+4*w,4)}, v{vT2} offset:{w*1024}")
    a(f"v_mov_b32 v{vT}, 0\nv_mov_b32 v{vFl}, 1")
    a("s_waitcnt lgkmcnt(0)")
    for i in range(4): a(f"v_add_f32 v{R+i}, v{R+i}, v{R+4+i}\nv_add_f32 v{R+8+i}, v{R+8+i}, v{R+12+i}")
    for i in range(4): a(f"v_add_f32 v{R+i}, v{R+i}, v{R+8+i}")
    a(f"buffer_store_dwordx4 {vr(R,4)}, v{vA}, s[32:35], s46 offen sc1\ns_waitcnt vmcnt(0)")
    one_lane(f"buffer_atomic_add v{vFl}, v{vT}, s[32:35], s47 offen sc0")
    a(f"s_waitcnt vmcnt(0)\nv_readfirstlane_b32 s50, v{vFl}")
    stamp(10, vST)
    a(f"s_cmp_eq_u32 s50, 15\ns_cbranch_scc0 {lab('cend')}")
    GB = 4
    for jj in range(16):
        a(f"buffer_load_dwordx4 {vr(GB+4*jj,4)}, v{vA}, s[32:35], s45 offen offset:{(jj%4)*1024} sc1")
        if jj % 4 == 3 and jj < 15: a("s_add_u32 s45, s45, 4096")
    a(f"v_lshlrev_b32 v{vT}, 3, v2\ns_lshl_b32 s45, s44, 9\ns_waitcnt vmcnt(0)")
    for st in (8, 4, 2, 1):
        for k in range(st):
            for i in range(4): a(f"v_add_f32 v{GB+4*k+i}, v{GB+4*k+i}, v{GB+4*(k+st)+i}")
    a(f"v_cvt_pk_bf16_f32 v{GB+4}, v{GB}, v{GB+1}\nv_cvt_pk_bf16_f32 v{GB+5}, v{GB+2}, v{GB+3}")
    a(f"buffer_store_dwordx2 {vr(GB+4,2)}, v{vT}, s[36:39], s45 offen {outflags}")
    a(f"{lab('cend')}:")
    if dbgtime:
        a(f"s_waitcnt vmcnt(0)\ns_memrealtime s[98:99]\ns_waitcnt lgkmcnt(0)\nv_mov_b32 v{vT}, s98\nv_mov_b32 v{vFl}, 0")
        one_lane(f"global_atomic_umax v{vFl}, v{vT}, s[16:17] offset:4")
    if stamps:
        a("s_waitcnt vmcnt(0)")
        stamp(11, vST)
        a(f"s_cmp_eq_u32 s20, 3\ns_cbranch_scc0 {lab('done')}")
        stamp_store(vST, vT, 0)
    a(f"s_branch {lab('done')}")

    a("; ---------------------------------------------------------------- helper")
    a(f"{lab('helper')}:")
    if hprio: a(f"s_setprio {hprio}")
    vL16 = 3; vZ = 4; vOne = 5; vL4 = 10; vP = 13; vT1 = 14; vT2 = 15; vFl = 18; vST = 19; vOr = 20; vPsr = 21; vMo = 22
    AA = 48
    a(f"v_lshlrev_b32 v{vL4}, 2, v2\nv_mov_b32 v{vZ}, 0\nv_add_u32 v{vT1}, {FLAGS}, v{vL4}\nds_write_b32 v{vT1}, v{vZ}")
    a(f"v_lshlrev_b32 v{vL16}, 4, v2\nv_mov_b32 v{vOne}, 1")
    if dbgtime: a("s_memrealtime s[98:99]")
    a("s_waitcnt lgkmcnt(0)\ns_barrier")
    if fakehelp:
        a(f"v_mov_b32 v{vT1}, {FL_P}\nv_mov_b32 v24, 1\nv_mov_b32 v25, 1\nv_mov_b32 v26, 1\nv_mov_b32 v27, 1\nds_write_b128 v{vT1}, v[24:27]\nds_write_b128 v{vT1}, v[24:27] offset:16\ns_waitcnt lgkmcnt(0)\ns_branch {lab('done')}")
    if fakecons: a(f"v_mov_b32 v{vT1}, {FL_CONS}\nv_mov_b32 v24, 1000\nv_mov_b32 v25, 1000\nv_mov_b32 v26, 1000\nv_mov_b32 v27, 1000\nds_write_b128 v{vT1}, v[24:27]\ns_waitcnt lgkmcnt(0)")
    if htest:
        srd(32, 18, 19, WS_SIZE)
        a(f"v_mov_b32 v{vFl}, {FL_LAND}\ns_mov_b32 s42, 200\ns_lshl_b32 s46, s2, 10\ns_add_u32 s46, s46, {O_OFF}\ns_lshr_b32 s47, s2, 2\ns_lshl_b32 s47, s47, 8\ns_add_u32 s47, s47, {C_OFF}")
        a(f"s_lshr_b32 s45, s2, 4\ns_lshl_b32 s45, s45, 14\ns_add_u32 s45, s45, {O_OFF}")
        a(f"{lab('ht')}:")
        ldswait("htw", vFl, vT1, "s42", 16)
        for op in htest.split("+"):
            if op == "st1k": a(f"buffer_store_dwordx4 {vr(AA,4)}, v{vL16}, s[32:35], s46 offen sc1\ns_waitcnt vmcnt(0)")
            if op == "st1kp": a(f"buffer_store_dwordx4 {vr(AA,4)}, v{vL16}, s[32:35], s46 offen\ns_waitcnt vmcnt(0)")
            if op == "st1knt": a(f"buffer_store_dwordx4 {vr(AA,4)}, v{vL16}, s[32:35], s46 offen sc1 nt\ns_waitcnt vmcnt(0)")
            if op == "st256": a(f"buffer_store_dword v{AA}, v{vL4}, s[32:35], s46 offen sc1\ns_waitcnt vmcnt(0)")
            if op == "at":
                one_lane(f"buffer_atomic_add v{vOne}, v{vZ}, s[32:35], s47 offen offset:8 sc0")
                a(f"s_waitcnt vmcnt(0)\nv_mov_b32 v{vOne}, 1")
            if op == "ld16":
                for jj in range(16):
                    a(f"buffer_load_dwordx4 {vr(AA+4*jj,4)}, v{vL16}, s[32:35], s45 offen offset:{(jj%4)*1024} sc1")
                a("s_waitcnt vmcnt(0)")
            if op == "ld1": a(f"buffer_load_dword v{AA+8}, v{vL4}, s[32:35], s46 offen sc1\ns_waitcnt vmcnt(0)")
            if op == "st16x256":
                for m in range(16): a(f"buffer_store_dword v{AA}, v{vL4}, s[32:35], s45 offen offset:{m*256} sc1")
        a(f"s_add_u32 s42, s42, 256\ns_cmp_lt_u32 s42, 2048\ns_cbranch_scc1 {lab('ht')}\ns_branch {lab('done')}")
    if nocons or nohelp: a(f"s_branch {lab('done')}")
    if dbgtime:
        a(f"s_not_b32 s98, s98\nv_mov_b32 v{vT1}, s98")
        one_lane(f"global_atomic_umax v{vZ}, v{vT1}, s[16:17] offset:8")
    srd(24, 10, 11, 0x100000)
    srd(28, 12, 13, 0x100000)
    srd(32, 18, 19, WS_SIZE)
    srd(36, 14, 15, 32768)
    if stamps: a(f"v_mov_b32 v{vST}, 0")
    stamp(0, vST)
    def dma(tag, srdname):
        if noef or hmode == 2:
            a("s_waitcnt vmcnt(0)")
            return
        a(f"s_mov_b32 s40, {STAGE}\ns_lshl_b32 s41, s22, {7 if inter else 10}\ns_mov_b32 s43, 64")
        vD = vL16
        if inter:
            vD = 24
            a(f"v_lshrrev_b32 v24, 3, v2\nv_lshlrev_b32 v24, 11, v24\nv_and_b32 v25, 7, v2\nv_lshlrev_b32 v25, 4, v25\nv_add_u32 v24, v24, v25")
        a(f"{lab(tag)}:")
        a(f"s_mov_b32 m0, s40\ns_add_u32 s40, s40, {SROW}\nbuffer_load_dwordx4 v{vD}, {srdname}, s41 offen {eflags} lds")
        a(f"s_add_u32 s41, s41, 16384\ns_waitcnt vmcnt({dmadepth-1})\ns_sub_u32 s43, s43, 1\ns_cmp_lg_u32 s43, 0\ns_cbranch_scc1 {lab(tag)}")
        a("s_waitcnt vmcnt(0)")
    a(f"s_lshl_b32 s58, s21, 8\ns_add_u32 s58, s58, {C_OFF}")
    a(f"s_lshl_b32 s59, s23, 8\ns_add_u32 s59, s59, {M_OFF}")
    a(f"s_cmp_lg_u32 s22, 0\ns_cbranch_scc1 {lab('noreset')}")
    for i in range(4): a(f"v_mov_b32 v{AA+i}, 0\nv_mov_b32 v{AA+4+i}, -1")
    a(f"s_mov_b64 exec, 3\nbuffer_store_dwordx4 {vr(AA,4)}, v{vL16}, s[32:35], s58 offen sc1\ns_mov_b64 exec, -1")
    a(f"buffer_store_dwordx4 {vr(AA+4,4)}, v{vL16}, s[32:35], s59 offen sc1")
    a(f"s_lshl_b32 s46, s21, 4\nv_mov_b32 v{vT1}, s46\ns_waitcnt vmcnt(0)")
    one_lane(f"global_store_dword v{vT1}, v{vOne}, s[16:17] sc1")
    a(f"{lab('noreset')}:")
    dma("edma", "s[24:27]")
    a(f"v_mov_b32 v{vFl}, {FL_E}\nds_write_b32 v{vFl}, v{vOne}")
    stamp(1, vST)
    vSr = 21; vL8 = 23
    a(f"v_add_u32 v{vOr}, {OP}, v{vL16}\nv_lshlrev_b32 v{vL8}, 3, v2")
    a(f"v_lshrrev_b32 v{vSr}, 4, v2\nv_and_b32 v{vSr}, 1, v{vSr}\nv_lshlrev_b32 v{vSr}, 10, v{vSr}\nv_and_b32 v{vT1}, 15, v2\nv_lshlrev_b32 v{vT1}, 4, v{vT1}\nv_add_u32 v{vSr}, v{vSr}, v{vT1}\nv_add_u32 v{vSr}, {PS}, v{vSr}")
    a(f"v_and_b32 v{vMo}, 1, v2\nv_lshlrev_b32 v{vMo}, 7, v{vMo}\nv_lshrrev_b32 v{vT1}, 1, v2\nv_lshlrev_b32 v{vT1}, 2, v{vT1}\nv_add_u32 v{vMo}, v{vMo}, v{vT1}")

    def wave_reduce(op, v, t1, t2):
        for ror in (8, 4, 2, 1):
            a(f"s_nop 1\n{op}_dpp v{v}, v{v}, v{v} row_ror:{ror} row_mask:0xf bank_mask:0xf")
        a(f"v_mov_b32 v{t1}, v{v}\nv_mov_b32 v{t2}, v{v}\ns_nop 1\nv_permlane16_swap_b32 v{t1}, v{t2}\n{op} v{v}, v{t1}, v{t2}")
        a(f"s_nop 0\nv_mov_b32 v{t1}, v{v}\nv_mov_b32 v{t2}, v{v}\ns_nop 1\nv_permlane32_swap_b32 v{t1}, v{t2}\n{op} v{v}, v{t1}, v{t2}")
    def wait_s(g):
        a(f"v_mov_b32 v{vFl}, {FL_S+4*g}")
        ldswait(f"s{g}w", vFl, vT1, "4", hsleep or 4)
    def s_publish(rd):
        t = f"r{rd}"
        if hmode in (1, 2, 4): return
        for w in range(4): a(f"ds_read_b128 {vr(AA+4*w,4)}, v{vSr} offset:{rd*2048+w*256}")
        a(f"s_lshl_b32 s45, s21, 1\ns_add_u32 s45, s45, {rd}\ns_lshl_b32 s45, s45, 13\ns_add_u32 s45, s45, {P_OFF}\ns_lshl_b32 s46, s22, 9\ns_add_u32 s46, s46, s45")
        a("s_waitcnt lgkmcnt(0)")
        for i in range(4): a(f"v_add_f32 v{AA+i}, v{AA+i}, v{AA+4+i}\nv_add_f32 v{AA+8+i}, v{AA+8+i}, v{AA+12+i}")
        for i in range(4): a(f"v_add_f32 v{AA+i}, v{AA+i}, v{AA+8+i}")
        a(f"s_mov_b32 exec_hi, 0\nbuffer_store_dwordx4 {vr(AA,4)}, v{vL16}, s[32:35], s46 offen sc1\ns_mov_b64 exec, -1")
        a(f"v_mov_b32 v{vT2}, 1")
        a("s_waitcnt vmcnt(0)")
        one_lane(f"buffer_atomic_add v{vT2}, v{vZ}, s[32:35], s58 offen offset:{4*rd} sc0")
        stamp(2 + 4 * rd, vST)
        a(f"s_waitcnt vmcnt(0)\nv_readfirstlane_b32 s50, v{vT2}")
        a(f"s_cmp_eq_u32 s50, 15\ns_cbranch_scc0 {lab(t+'_nl')}")
        for jj in range(16):
            if jj % 8 == 0 and jj: a("s_add_u32 s45, s45, 4096")
            for h in range(2):
                a(f"buffer_load_dword v{AA+16*h+jj}, v{vL4}, s[32:35], s45 offen offset:{(jj%8)*512+h*256} sc1")
        a("s_waitcnt vmcnt(0)")
        for h in range(2):
            B0 = AA + 16 * h
            T = AA + 40
            for st in (8, 4, 2, 1):
                for i in range(st): a(f"v_add_f32 v{B0+i}, v{B0+i}, v{B0+i+st}")
            a(f"v_mul_f32 v{vP}, 0x3db8aa3b, v{B0}")
            a(f"v_mov_b32 v{T+1}, v{vP}")
            wave_reduce("v_max_f32", T + 1, T + 2, T + 3)
            a(f"v_sub_f32 v{vP}, v{vP}, v{T+1}\nv_exp_f32 v{vP}, v{vP}\ns_nop 0\nv_mov_b32 v{T+1}, v{vP}")
            wave_reduce("v_add_f32", T + 1, T + 2, T + 3)
            a(f"v_rcp_f32 v{T+1}, v{T+1}\ns_nop 0\nv_mul_f32 v{vP}, v{vP}, v{T+1}")
            a(f"v_cvt_pk_bf16_f32 v{T}, v{vP}, v{vP}\nv_lshlrev_b32 v{T}, 16, v{T}\nv_sub_f32 v{T+1}, v{vP}, v{T}\ns_nop 1")
            a(f"v_mov_b32_dpp v{T+2}, v{vP} quad_perm:[1,0,3,2] row_mask:0xf bank_mask:0xf")
            a(f"v_mov_b32_dpp v{T+3}, v{T+1} quad_perm:[1,0,3,2] row_mask:0xf bank_mask:0xf")
            a(f"v_cvt_pk_bf16_f32 v{T+4}, v{vP}, v{T+2}\nv_cvt_pk_bf16_f32 v{T+5}, v{T+3}, v{T+1}")
            a(f"v_and_b32 v{T+6}, 1, v2\nv_cmp_eq_u32 vcc, 1, v{T+6}\ns_nop 1\nv_cndmask_b32 v{T+4}, v{T+4}, v{T+5}, vcc")
            a(f"v_mov_b32 v{T+5}, 0x7fc07fc0\nv_cmp_eq_u32 vcc, -1, v{T+4}\ns_nop 1\nv_cndmask_b32 v{T+8+h}, v{T+4}, v{T+5}, vcc")
        for h in range(2):
            a(f"buffer_store_dword v{AA+48+h}, v{vMo}, s[32:35], s59 offen offset:{(2*rd+h)*256} sc1")
        a(f"{lab(t+'_nl')}:")
        stamp(3 + 4 * rd, vST)
    def p_fetch(rd):
        t = f"p{rd}"
        if hmode in (1, 2, 4):
            a(f"v_mov_b32 v{vFl}, {FL_P+8*rd}\nds_write_b32 v{vFl}, v{vOne}\nds_write_b32 v{vFl}, v{vOne} offset:4")
            return
        a(f"{lab(t)}:\nbuffer_load_dwordx2 {vr(AA,2)}, v{vL8}, s[32:35], s59 offen offset:{rd*512} sc1\ns_waitcnt vmcnt(0)\nv_cmp_eq_u32 vcc, -1, v{AA}\nv_cmp_eq_u32 s[46:47], -1, v{AA+1}\ns_nop 1\ns_or_b64 vcc, vcc, s[46:47]\ns_cmp_eq_u64 vcc, 0\ns_cbranch_scc1 {lab(t+'_ok')}\n{sleep(msleep)}\ns_branch {lab(t)}\n{lab(t+'_ok')}:")
        a(f"v_add_u32 v{vT1}, {PK+rd*512}, v{vL8}\nds_write_b64 v{vT1}, {vr(AA,2)}\nv_mov_b32 v{vFl}, {FL_P+8*rd}\ns_waitcnt lgkmcnt(0)\nds_write_b32 v{vFl}, v{vOne}\nds_write_b32 v{vFl}, v{vOne} offset:4")
        stamp(4 + 4 * rd, vST)

    wait_s(0)
    dma("fdma", "s[28:31]")
    a(f"v_mov_b32 v{vFl}, {FL_F}\nds_write_b32 v{vFl}, v{vOne}")
    stamp(18, vST)
    if hmode not in (1, 2, 4):
        a(f"s_lshl_b32 s46, s21, 4\nv_mov_b32 v{vT1}, s46")
        a(f"{lab('wgo')}:\nglobal_load_dword v{vT2}, v{vT1}, s[16:17] sc1\ns_waitcnt vmcnt(0)\nv_readfirstlane_b32 s50, v{vT2}\ns_cmp_ge_u32 s50, 1\ns_cbranch_scc1 {lab('wgo_ok')}\n{sleep(32)}\ns_branch {lab('wgo')}\n{lab('wgo_ok')}:")
    wait_s(1); s_publish(0)
    wait_s(2); p_fetch(0)
    wait_s(3); s_publish(1)
    a(f"v_mov_b32 v{vFl}, {FL_O}")
    ldswait("wo0", vFl, vT1, "4", hsleep or 8)
    p_fetch(1)
    if NP:
        a(f"v_mov_b32 v{vFl}, {FL_W3}")
        ldswait("ww3", vFl, vT1, "4", 8)
        a(f"s_mul_i32 s45, s21, {NTK*256}\ns_mul_i32 s46, s22, {NP*256}\ns_add_u32 s45, s45, s46\ns_add_u32 s45, s45, {W2_OFF}")
        nst = (NP * 256 + 1023) // 1024
        for n in range(nst):
            a(f"v_add_u32 v{vT1}, {WS3 + n*1024}, v{vL16}\nds_read_b128 {vr(AA+4*n,4)}, v{vT1}")
        a("s_waitcnt lgkmcnt(0)")
        if NP * 256 < 1024: a(f"s_mov_b32 exec_lo, {hex((1 << (NP*16)) - 1) if NP*16 < 32 else -1}\ns_mov_b32 exec_hi, 0")
        for n in range(nst):
            a(f"buffer_store_dwordx4 {vr(AA+4*n,4)}, v{vL16}, s[32:35], s45 offen offset:{n*1024} sc1")
        a(f"s_mov_b64 exec, -1\nv_mov_b32 v{vT2}, 1\ns_waitcnt vmcnt(0)")
        one_lane(f"buffer_atomic_add v{vT2}, v{vZ}, s[32:35], s58 offen offset:8 sc0")
        a(f"s_waitcnt vmcnt(0)\nv_readfirstlane_b32 s50, v{vT2}\ns_cmp_eq_u32 s50, 15\ns_cbranch_scc1 {lab('wall_ok')}")
        a(f"{lab('wall')}:\n{sleep(32)}\nbuffer_load_dword v{vT2}, v{vZ}, s[32:35], s58 offen offset:8 sc1\ns_waitcnt vmcnt(0)\nv_readfirstlane_b32 s50, v{vT2}\ns_cmp_ge_u32 s50, 16\ns_cbranch_scc0 {lab('wall')}\n{lab('wall_ok')}:")
        stamp(10, vST)
        a(f"s_mov_b32 s42, 0\nv_mov_b32 v{vFl}, {FL_LPROG}")
        a(f"{lab('tk')}:\ns_add_u32 s43, s42, {U0 - D}")
        ldswait("tkw", vFl, vT1, "s43", 2)
        a(f"v_mov_b32 v{vT2}, 1")
        one_lane(f"buffer_atomic_add v{vT2}, v{vZ}, s[32:35], s58 offen offset:12 sc0")
        a(f"s_and_b32 s43, s42, 3\ns_lshl_b32 s43, s43, 3\ns_add_u32 s43, s43, {FL_TQ}\nv_mov_b32 v{vT1}, s43\ns_add_u32 s42, s42, 1\nv_mov_b32 v{AA+1}, s42\ns_waitcnt vmcnt(0)\nv_mov_b32 v{AA}, v{vT2}")
        one_lane(f"ds_write_b64 v{vT1}, {vr(AA,2)}")
        a(f"v_readfirstlane_b32 s50, v{vT2}\ns_cmp_lt_u32 s50, {NTK}\ns_cbranch_scc1 {lab('tk')}")
        stamp(11, vST)
    if stamps:
        a("s_waitcnt vmcnt(0)")
        stamp(24, vST)
        stamp_store(vST, vT1, 1)
    a(f"{lab('done')}:\ns_endpgm")

    head = f"""; Linformer low-rank-projection attention, decode step (B=4 H=16 Sq=1 Skv=8192 Dh=256 R=64), gfx950.
;
; (the reference's E K and F V products re-associated), so K and V are each streamed from HBM once.
;
; @launch grid=(256,1,1) block=(384,1,1) lds={LDS_BYTES}
.amdgcn_target "amdgcn-amd-amdhsa--gfx950"
.text
.globl {N}
.p2align 8
.type {N},@function
"""
    tail = f"""
.section .rodata,"a"
.p2align 6
.amdhsa_kernel {N}
  .amdhsa_next_free_vgpr 176
  .amdhsa_next_free_sgpr 102
  .amdhsa_accum_offset 176
  .amdhsa_group_segment_fixed_size 0
  .amdhsa_kernarg_size 64
  .amdhsa_float_denorm_mode_32 3
  .amdhsa_float_denorm_mode_16_64 3
  .amdhsa_user_sgpr_count 2
  .amdhsa_user_sgpr_kernarg_segment_ptr 1
  .amdhsa_system_sgpr_workgroup_id_x 1
.end_amdhsa_kernel
"""
    return head + a.text() + tail

if __name__ == "__main__":
    out = sys.argv[1]
    kw = eval("dict(%s)" % (sys.argv[2] if len(sys.argv) > 2 else ""))
    open(out, "w").write(gen(**kw))
    import build
    print(build.build(out), "lds", LDS_BYTES)
```

```python
import sys

KNAME = "standalone__low_rank_proj_linformer__decode_kernel"

P_OFF = 0x000000
W2_OFF = 0x200000
O_OFF = 0x400000
C_OFF = 0x600000
M_OFF = 0x620000
ST_OFF = 0x700000
WS_SIZE = 0x800000
SENT = 0xFFFFFFFF

RING = 0
STAGE, SROW = 65536, 1040
SS = STAGE + 64 * SROW
PS = SS + 2048
PK = PS + 4096
OP = PK + 1024
FLAGS = OP + 16384
FL_LAND, FL_CONS, FL_S, FL_O, FL_P, FL_E, FL_F, FL_RST = FLAGS, FLAGS + 16, FLAGS + 32, FLAGS + 48, FLAGS + 64, FLAGS + 80, FLAGS + 84, FLAGS + 88
FL_TOT, FL_LPROG, FL_W3, FL_TQ = FLAGS + 4, FLAGS + 8, FLAGS + 92, FLAGS + 96
WS3, WQ = STAGE, STAGE + 4096
LDS_BYTES = FLAGS + 256

class A:
    def __init__(self): self.l = []
    def __call__(self, s):
        for x in s.split("\n"):
            x = x.strip()
            if x: self.l.append(("" if x.endswith(":") else "  ") + x)
    def text(self): return "\n".join(self.l)

def vr(b, n=1): return f"v{b}" if n == 1 else f"v[{b}:{b+n-1}]"

def gen(W=20, stamps=False, guard=False, dbgtime=False, kflags="nt", vflags="nt", eflags="", dmadepth=8, msleep=16, hprio=0, csleep=1, noef=False, nocons=False, lin=False, nohelp=False, nochk=False, nopub=False, fakecons=False, fakehelp=False, noread=False, nocomp=False, hmode=0, hsleep=None, htest=None, swapkv=False, early=True, outflags='', NP=0, D=1, WE=0, NE=0, l0=False, lprio=0, inter=False, rot=None, sflags='sc1', oflags='sc1', WP=0):
    JS, US = (15, 19) if inter else (18, 15)
    a = A()
    N = KNAME
    NS3 = 8 - NP
    U0 = 56 + NS3
    NTK = 16 * NP
    lab = lambda s: f"L_{s}"
    def sleep(n):
        g = f"\ns_add_u32 s97, s97, 1\ns_cmp_gt_u32 s97, 0x100000\ns_cbranch_scc1 {lab('done')}" if guard else ""
        return f"s_sleep {n}" + g
    def srd(base, plo, phi, size):
        a(f"s_mov_b32 s{base}, s{plo}\ns_and_b32 s{base+1}, s{phi}, 0xffff\ns_mov_b32 s{base+2}, {size}\ns_mov_b32 s{base+3}, 0x20000")
    def stamp(idx, vst):
        if stamps:
            a(f"s_memrealtime s[98:99]\ns_waitcnt lgkmcnt(0)\nv_writelane_b32 v{vst}, s98, {idx}")
    def stamp_s(sidx, add, vst):
        if stamps:
            a(f"s_add_u32 s96, {sidx}, {add}\ns_mov_b32 m0, s96\ns_memrealtime s[98:99]\ns_waitcnt lgkmcnt(0)\nv_writelane_b32 v{vst}, s98, m0")
    def stamp_store(vst, vtmp, slot):
        if stamps:
            a(f"s_lshl_b32 s98, s2, 3\ns_add_u32 s98, s98, {slot}\ns_lshl_b32 s98, s98, 8\ns_add_u32 s98, s98, {ST_OFF}")
            a(f"v_mbcnt_lo_u32_b32 v{vtmp}, -1, 0\nv_mbcnt_hi_u32_b32 v{vtmp}, -1, v{vtmp}\nv_lshlrev_b32 v{vtmp}, 2, v{vtmp}")
            a(f"buffer_store_dword v{vst}, v{vtmp}, s[32:35], s98 offen\ns_waitcnt vmcnt(0)")
    def ldswait(tag, vaddr, vtmp, target, slp, cmp="s_cmp_ge_i32"):
        a(f"{lab(tag)}:\nds_read_b32 v{vtmp}, v{vaddr}\ns_waitcnt lgkmcnt(0)\nv_readfirstlane_b32 s50, v{vtmp}\n{cmp} s50, {target}\ns_cbranch_scc1 {lab(tag+'_ok')}\n{sleep(slp)}\ns_branch {lab(tag)}\n{lab(tag+'_ok')}:")
    def one_lane(instr):
        a(f"s_mov_b64 exec, 1\n{instr}\ns_mov_b64 exec, -1")
    COL0 = "s_mov_b32 s46, 0x00010001\ns_mov_b32 s47, 0x00010001\ns_mov_b64 exec, s[46:47]"

    a(f"{N}:")
    a(f"s_cmp_ge_u32 s2, 256\ns_cbranch_scc1 {lab('done')}")
    if stamps: a("s_memrealtime s[92:93]")
    a("s_load_dwordx16 s[4:19], s[0:1], 0")
    if guard: a("s_mov_b32 s97, 0")
    a("v_lshrrev_b32 v1, 6, v0\nv_and_b32 v2, 63, v0")
    a("s_and_b32 s3, s2, 7\ns_lshr_b32 s24, s2, 3")
    a("v_readfirstlane_b32 s20, v1")
    a("s_and_b32 s21, s24, 15\ns_lshr_b32 s24, s24, 4\ns_lshl_b32 s24, s24, 3\ns_add_u32 s22, s24, s3\ns_lshl_b32 s23, s21, 2")
    if l0:
        a(f"s_cmp_eq_u32 s20, 5\ns_cbranch_scc1 {lab('helper')}")
        a(f"s_sub_u32 s20, s20, 1\ns_cbranch_scc0 {lab('consumer')}")
    else:
        a(f"s_cmp_lt_u32 s20, 4\ns_cbranch_scc1 {lab('consumer')}")
        a(f"s_cmp_eq_u32 s20, 5\ns_cbranch_scc1 {lab('helper')}")
    if lprio: a(f"s_setprio {lprio}")

    vL16 = 3; vLand = 4; vT = 5; vC = 8; vST = 12
    a("; ---------------------------------------------------------------- loader")
    a(f"v_lshlrev_b32 v{vL16}, 4, v2\nv_mov_b32 v{vLand}, {FL_LAND}\nv_mov_b32 v6, {FL_CONS}")
    a(f"s_lshl_b32 s40, s23, 22\ns_lshl_b32 s41, s22, {JS}\ns_add_u32 s40, s40, s41")
    if stamps: a(f"v_mov_b32 v{vST}, 0")
    a("s_waitcnt lgkmcnt(0)")
    if stamps: a(f"v_writelane_b32 v{vST}, s92, 11")
    stamp(12, vST)
    srd(24, 6, 7, 0x10000000)
    srd(32, 18, 19, WS_SIZE)
    EARLY = 16 if early else 0
    for p in range(0, EARLY, 4):
        a(f"s_mov_b32 m0, {p*1024}\ns_add_u32 s48, s40, {p*1024}")
        for pp in range(4):
            a(f"buffer_load_dwordx4 v{vL16}, s[24:27], s48 offen offset:{pp*1024} {kflags} lds")
    stamp(13, vST)
    a("s_barrier")
    stamp(0, vST)
    if stamps: a("s_waitcnt vmcnt(15)")
    stamp(14, vST)
    if stamps: a("s_memtime s[62:63]\ns_waitcnt lgkmcnt(0)")
    a(f"s_mov_b32 s41, 0\ns_mov_b32 s60, 0\nds_read_b128 {vr(vC,4)}, v6")
    if early:
        a("s_mov_b32 s42, s40\ns_mov_b32 s43, 0\ns_mov_b32 s44, 0\ns_mov_b32 s45, -1")
        a(f"s_branch {lab('lkg2')}")
    def unit_body(tag, flags, W=W):
        for grp in range(4):
            if grp == 2 and tag == "lk": a(f"{lab('lkg2')}:")
            if nocons and not fakecons or nochk: a(f"s_branch {lab(f'{tag}c{grp}_ok2')}")
            a(f"s_waitcnt lgkmcnt(0)\nv_readfirstlane_b32 s50, v{vC+grp}\ns_cmp_ge_i32 s50, s45\ns_cbranch_scc1 {lab(f'{tag}c{grp}_ok')}")
            a(f"{lab(f'{tag}c{grp}')}:\nds_read_b128 {vr(vC,4)}, v6\ns_waitcnt lgkmcnt(0)\nv_readfirstlane_b32 s50, v{vC+grp}\ns_cmp_ge_i32 s50, s45\ns_cbranch_scc1 {lab(f'{tag}c{grp}_ok')}\ns_add_u32 s60, s60, 1\n{sleep(1)}\ns_branch {lab(f'{tag}c{grp}')}\n{lab(f'{tag}c{grp}_ok')}:")
            a(f"ds_read_b128 {vr(vC,4)}, v6\n{lab(f'{tag}c{grp}_ok2')}:")
            for half in range(2):
                off = grp * 8192 + half * 4096
                a(f"s_add_u32 m0, s43, {off}\ns_add_u32 s48, s42, {off}")
                for pp in range(4):
                    p = grp * 8 + half * 4 + pp
                    a(f"s_waitcnt vmcnt({W-1})")
                    if (p - W + 1) % 8 == 0:
                        a(f"s_add_i32 s51, s44, {p-W+1}\nv_mov_b32 v{vT}, s51")
                        one_lane(f"ds_write_b32 v{vLand}, v{vT}")
                    a(f"buffer_load_dwordx4 v{vL16}, s[24:27], s48 offen offset:{pp*1024} {flags} lds")
    def unit_consts():
        a("s_and_b32 s43, s41, 1\ns_lshl_b32 s43, s43, 15\ns_lshl_b32 s44, s41, 5\ns_sub_u32 s45, s41, 1")
    def lprog():
        a(f"v_mov_b32 v{vT}, s41")
        one_lane(f"ds_write_b32 v{vLand}, v{vT} offset:8")
    def loader_loop(tag, flags, uend, W=W):
        a(f"{lab(tag)}:")
        a(f"s_lshr_b32 s42, s41, 3\ns_and_b32 s42, s42, 3\ns_lshl_b32 s42, s42, 22\ns_and_b32 s43, s41, 7\ns_lshl_b32 s43, s43, {US}\ns_add_u32 s42, s42, s43\ns_add_u32 s42, s42, s40")
        if lin: a("s_and_b32 s42, s41, 31\ns_lshl_b32 s42, s42, 15\ns_lshl_b32 s43, s2, 20\ns_add_u32 s42, s42, s43")
        if rot:
            ur = {'uj': 's22', 'ug': 's21', 'ujg': 's57', 'hg': None, 'hgujg': 's57', 'uj2': 's58'}[rot]
            a("s_add_u32 s57, s21, s22\ns_lshr_b32 s58, s22, 1")
            a("s_lshr_b32 s42, s41, 3")
            if rot.startswith('hg'): a("s_add_u32 s42, s42, s21")
            a("s_and_b32 s42, s42, 3\ns_lshl_b32 s42, s42, 22")
            if ur: a(f"s_add_u32 s43, s41, {ur}")
            else: a("s_mov_b32 s43, s41")
            a(f"s_and_b32 s43, s43, 7\ns_lshl_b32 s43, s43, {US}\ns_add_u32 s42, s42, s43\ns_add_u32 s42, s42, s40")
        unit_consts()
        if NP and tag in ("lv", "lw"): lprog()
        unit_body(tag, flags, W)
        if stamps:
            a(f"s_and_b32 s49, s41, 7\ns_cmp_eq_u32 s49, 7\ns_cbranch_scc0 {lab(tag+'nost')}\ns_lshr_b32 s49, s41, 3")
            stamp_s("s49", 1, vST)
            a(f"{lab(tag+'nost')}:")
        a(f"s_add_u32 s41, s41, 1\ns_cmp_lt_u32 s41, {uend}\ns_cbranch_scc1 {lab(tag)}")
    if swapkv: a("s_mov_b32 s24, s8\ns_and_b32 s25, s9, 0xffff")
    loader_loop("lk", kflags, 32)
    if swapkv: a("s_mov_b32 s24, s6\ns_and_b32 s25, s7, 0xffff")
    else: a("s_mov_b32 s24, s8\ns_and_b32 s25, s9, 0xffff")
    WL = W
    if NE:
        loader_loop("lv", vflags, U0 - NE)
        loader_loop("lw", vflags, U0, WE)
        WL = WE
    else:
        loader_loop("lv", vflags, U0)
    if WP: WL = WP
    if NP:
        lg = NP.bit_length() - 1
        a(f"s_mov_b32 s52, 0\ns_add_u32 s53, s23, 3\ns_lshl_b32 s53, s53, 22\ns_add_u32 s53, s53, {NS3 << US}")
        a(f"s_mul_i32 s54, s21, {NTK*256}\ns_add_u32 s54, s54, {W2_OFF}")
        a(f"{lab('lp')}:")
        lprog()
        a(f"s_and_b32 s49, s52, 3\ns_lshl_b32 s49, s49, 3\ns_add_u32 s49, s49, {FL_TQ}\nv_mov_b32 v7, s49\ns_add_u32 s52, s52, 1")
        a(f"{lab('lptk')}:\nds_read_b64 v[14:15], v7\ns_waitcnt lgkmcnt(0)\nv_readfirstlane_b32 s55, v14\nv_readfirstlane_b32 s56, v15\ns_cmp_eq_u32 s56, s52\ns_cbranch_scc1 {lab('lptk_ok')}\n{sleep(1)}\ns_branch {lab('lptk')}\n{lab('lptk_ok')}:")
        a(f"s_cmp_ge_u32 s55, {NTK}\ns_cbranch_scc1 {lab('lpend')}")
        a(f"s_lshr_b32 s42, s55, {lg}\ns_lshl_b32 s42, s42, {JS}\ns_and_b32 s43, s55, {NP-1}\ns_lshl_b32 s43, s43, {US}\ns_add_u32 s42, s42, s43\ns_add_u32 s42, s42, s53")
        a(f"s_lshl_b32 s48, s55, 8\ns_add_u32 s48, s48, s54\ns_and_b32 s43, s41, 3\ns_lshl_b32 s43, s43, 8\ns_add_u32 m0, s43, {WQ}")
        a(f"s_mov_b64 exec, 0xffff\nbuffer_load_dwordx4 v{vL16}, s[32:35], s48 offen sc1 lds\ns_mov_b64 exec, -1")
        unit_consts()
        a(f"ds_read_b128 {vr(vC,4)}, v6")
        unit_body("lq", vflags, WL)
        a(f"s_add_u32 s41, s41, 1\ns_branch {lab('lp')}")
        a(f"{lab('lpend')}:")
        a(f"v_mov_b32 v{vT}, s41")
        one_lane(f"ds_write_b32 v{vLand}, v{vT} offset:4")
        a("s_lshl_b32 s44, s41, 5")
        for o in range(-((WL - 1) // 8) * 8, 1, 8):
            a(f"s_waitcnt vmcnt({-o})\ns_add_i32 s51, s44, {o}\nv_mov_b32 v{vT}, s51")
            one_lane(f"ds_write_b32 v{vLand}, v{vT}")
        if stamps: a(f"v_writelane_b32 v{vST}, s41, 28")
    else:
        tot = 2048
        for tgt in range(((tot - WL + 1) + 7) // 8 * 8, tot + 1, 8):
            a(f"s_waitcnt vmcnt({tot - tgt})\nv_mov_b32 v{vT}, {tgt}")
            one_lane(f"ds_write_b32 v{vLand}, v{vT}")
    a("s_waitcnt lgkmcnt(0)")
    stamp(9, vST)
    if stamps: a(f"s_memtime s[64:65]\ns_waitcnt lgkmcnt(0)\ns_sub_u32 s64, s64, s62\nv_writelane_b32 v{vST}, s64, 29")
    if stamps: a(f"s_getreg_b32 s49, hwreg(HW_REG_XCC_ID)\nv_writelane_b32 v{vST}, s49, 30\nv_writelane_b32 v{vST}, s60, 31")
    stamp_store(vST, vT, 2)
    a(f"s_branch {lab('done')}")

    a("; ---------------------------------------------------------------- consumers (s20 = 0..3)")
    a(f"{lab('consumer')}:")
    R = 4; Qr = 36; EF = 52; ACC = 116; X = 132; TMP = 140; BB = 148; W4 = 156
    vRdK = 160; vRdV = 161; vSa = 162; vBa = 163; vPsa = 164; vWs = 165; vOa = 166; vLand = 167; vCons = 168; vT = 169; vA = 170
    vOne = 171; vFl = 172; vST = 173; vG16 = 174; vWs0 = 175; vT2 = 3
    Aa = X; DD = ACC
    a(f"v_and_b32 v{vT}, 31, v2\nv_lshlrev_b32 v{vT}, 4, v{vT}\ns_lshl_b32 s41, s23, 9")
    a("s_waitcnt lgkmcnt(0)")
    srd(36, 4, 5, 32768)
    for g in range(4):
        a(f"buffer_load_dwordx4 {vr(Qr+4*g,4)}, v{vT}, s[36:39], s41 offen offset:{g*512}")
    srd(32, 18, 19, WS_SIZE)
    a(f"s_lshl_b32 s40, s20, 13")
    a(f"v_lshlrev_b32 v{vRdK}, 4, v2\nv_add_u32 v{vRdK}, s40, v{vRdK}")
    a(f"v_lshrrev_b32 v{vG16}, 4, v2\nv_lshlrev_b32 v{vRdV}, 11, v{vG16}\nv_and_b32 v{vT}, 15, v2\nv_lshlrev_b32 v{vT}, 4, v{vT}\nv_add_u32 v{vRdV}, v{vRdV}, v{vT}\nv_add_u32 v{vRdV}, s40, v{vRdV}")
    a(f"v_lshlrev_b32 v{vG16}, 4, v{vG16}")
    a(f"s_lshl_b32 s42, s20, 9\ns_add_u32 s42, s42, {SS}")
    a(f"v_and_b32 v{vSa}, 16, v2\nv_lshrrev_b32 v{vSa}, 2, v{vSa}\nv_and_b32 v{vT}, 8, v2\nv_add_u32 v{vSa}, v{vSa}, v{vT}")
    a(f"v_and_b32 v{vT}, 4, v2\nv_lshlrev_b32 v{vT}, 2, v{vT}\nv_add_u32 v{vSa}, v{vSa}, v{vT}")
    a(f"v_lshrrev_b32 v{vT}, 5, v2\nv_lshlrev_b32 v{vT}, 1, v{vT}\nv_add_u32 v{vSa}, v{vSa}, v{vT}\nv_add_u32 v{vSa}, s42, v{vSa}")
    a(f"v_and_b32 v{vT}, 1, v2\nv_lshlrev_b32 v{vBa}, 8, v{vT}\nv_add_u32 v{vBa}, v{vBa}, v{vG16}\nv_add_u32 v{vBa}, s42, v{vBa}")
    a(f"v_add_u32 v{vWs0}, s42, v{vG16}")
    a(f"s_lshl_b32 s43, s20, 8\ns_add_u32 s43, s43, {PS}\nv_add_u32 v{vPsa}, s43, v{vG16}")
    a(f"v_lshrrev_b32 v{vOa}, 5, v2\nv_lshlrev_b32 v{vOa}, 9, v{vOa}\nv_and_b32 v{vT}, 15, v2\nv_lshlrev_b32 v{vT}, 5, v{vT}\nv_add_u32 v{vOa}, v{vOa}, v{vT}")
    a(f"v_and_b32 v{vT}, 16, v2\nv_lshrrev_b32 v{vT}, 2, v{vT}\nv_add_u32 v{vOa}, v{vOa}, v{vT}\ns_lshl_b32 s43, s20, 10\ns_add_u32 s43, s43, {OP}\nv_add_u32 v{vOa}, s43, v{vOa}")
    a(f"v_mov_b32 v{vLand}, {FL_LAND}\ns_lshl_b32 s43, s20, 2\ns_add_u32 s43, s43, {FL_CONS}\nv_mov_b32 v{vCons}, s43\nv_mov_b32 v{vOne}, 1")
    a("s_mov_b32 s55, 0xffff0000")
    if stamps: a(f"v_mov_b32 v{vST}, 0")
    a("s_barrier")
    if nocons: a(f"s_branch {lab('done')}")
    stamp(0, vST)
    a("s_waitcnt vmcnt(0)")
    a("s_mov_b32 s41, 0\ns_lshl_b32 s44, s20, 3\ns_add_u32 s44, s44, 8")

    def unit_head(tag, vbase):
        ldswait(tag, vLand, vT, "s44", csleep)
        a(f"s_and_b32 s45, s41, 1\ns_lshl_b32 s45, s45, 15\nv_add_u32 v{vA}, s45, v{vbase}")
    def signal_consumed():
        a(f"s_add_u32 s45, s41, 1\nv_mov_b32 v{vT}, s45")
        one_lane(f"ds_write_b32 v{vCons}, v{vT}")

    a(f"{lab('kunit')}:")
    unit_head("kw", vRdK)
    for t in range(8 if not noread else 0): a(f"ds_read_b128 {vr(R+4*t,4)}, v{vA} offset:{t*1024}")
    for t in range(8):
        a(f"s_waitcnt lgkmcnt({7-t})")
        if t == 7: signal_consumed()
        if noread or nocomp: continue
        r = R + 4 * t
        a(f"v_dot2_f32_bf16 v{Aa+t}, v{r}, v{Qr}, 0")
        for i in range(1, 4): a(f"v_dot2_f32_bf16 v{Aa+t}, v{r+i}, v{Qr+i}, v{Aa+t}")
    a("s_nop 0")
    for p in range(4): a(f"v_permlane16_swap_b32 v{Aa+2*p}, v{Aa+2*p+1}")
    for p in range(4): a(f"v_add_f32 v{TMP+p}, v{Aa+2*p}, v{Aa+2*p+1}")
    c0, c1, d = TMP + 4, TMP + 5, TMP + 6
    a(f"v_add_f32_dpp v{c0}, v{TMP}, v{TMP} row_ror:8 row_mask:0xf bank_mask:0x3")
    a(f"v_add_f32_dpp v{c0}, v{TMP+1}, v{TMP+1} row_ror:8 row_mask:0xf bank_mask:0xc")
    a(f"v_add_f32_dpp v{c1}, v{TMP+2}, v{TMP+2} row_ror:8 row_mask:0xf bank_mask:0x3")
    a(f"v_add_f32_dpp v{c1}, v{TMP+3}, v{TMP+3} row_ror:8 row_mask:0xf bank_mask:0xc")
    a("s_nop 0")
    a(f"v_add_f32_dpp v{d}, v{c0}, v{c0} row_half_mirror row_mask:0xf bank_mask:0x5")
    a(f"v_add_f32_dpp v{d}, v{c1}, v{c1} row_half_mirror row_mask:0xf bank_mask:0xa")
    a("s_nop 1")
    a(f"v_add_f32_dpp v{d}, v{d}, v{d} quad_perm:[1,0,3,2] row_mask:0xf bank_mask:0xf")
    a("s_nop 1")
    a(f"v_add_f32_dpp v{d}, v{d}, v{d} quad_perm:[2,3,0,1] row_mask:0xf bank_mask:0xf")
    a(f"v_cvt_pk_bf16_f32 v{c0}, v{d}, v{d}")
    a(f"s_and_b32 s45, s41, 7\ns_lshl_b32 s46, s45, 5\nv_add_u32 v{vT}, s46, v{vSa}")
    a(f"v_lshlrev_b32 v{c1}, 16, v{c0}")
    a(f"ds_write_b16 v{vT}, v{c0}")
    a(f"v_sub_f32 v{c1}, v{d}, v{c1}")
    a(f"v_cvt_pk_bf16_f32 v{TMP}, v{c1}, v{c1}")
    a(f"ds_write_b16 v{vT}, v{TMP} offset:256")
    a(f"s_cmp_eq_u32 s45, 7\ns_cbranch_scc0 {lab('knoend')}")
    a(f"s_cmp_eq_u32 s41, 7\ns_cbranch_scc0 {lab('noE')}")
    a(f"v_mov_b32 v{vFl}, {FL_E}")
    ldswait("wE", vFl, vT, "1", 2)
    a(f"v_and_b32 v{vT}, 15, v2\nv_mul_u32_u24 v{vA}, {SROW}, v{vT}\nv_lshrrev_b32 v{vT}, 5, v2\nv_lshlrev_b32 v{vT}, 7, v{vT}\nv_add_u32 v{vA}, v{vA}, v{vT}")
    a(f"v_and_b32 v{vT}, 16, v2\nv_add_u32 v{vA}, v{vA}, v{vT}\ns_lshl_b32 s45, s20, 5\ns_add_u32 s45, s45, {STAGE}\nv_add_u32 v{vA}, s45, v{vA}")
    for tl in range(4):
        for ks in range(4):
            a(f"ds_read_b128 {vr(EF+16*tl+4*ks,4)}, v{vA} offset:{tl*16*SROW+ks*256}")
        a("s_waitcnt lgkmcnt(4)")
    a(f"{lab('noE')}:")
    a("s_waitcnt lgkmcnt(0)")
    for ks in range(4): a(f"ds_read_b128 {vr(R+4*ks,4)}, v{vBa} offset:{ks*64}")
    for ks in range(4):
        a(f"s_waitcnt lgkmcnt({3-ks})")
        for tl in range(4):
            c = "0" if ks == 0 else vr(DD+4*tl, 4)
            a(f"v_mfma_f32_16x16x32_bf16 {vr(DD+4*tl,4)}, {vr(EF+16*tl+4*ks,4)}, {vr(R+4*ks,4)}, {c}")
    a(f"s_lshr_b32 s45, s41, 3\ns_lshl_b32 s48, s45, 10\nv_add_u32 v{vA}, s48, v{vPsa}\ns_lshl_b32 s48, s45, 2\ns_add_u32 s48, s48, {FL_S}\nv_mov_b32 v{vFl}, s48")
    a("s_nop 4")
    for i in range(16):
        a(f"v_add_f32_dpp v{DD+i}, v{DD+i}, v{DD+i} quad_perm:[1,0,3,2] row_mask:0xf bank_mask:0xf")
    a(COL0)
    for tl in range(4): a(f"ds_write_b128 v{vA}, {vr(DD+4*tl,4)} offset:{tl*64}")
    a("s_mov_b64 exec, -1\ns_waitcnt lgkmcnt(0)")
    one_lane(f"ds_add_u32 v{vFl}, v{vOne}")
    for i in range(12): a(f"v_mov_b32 v{Qr+i}, v{Qr+4+i}")
    stamp_s("s45", 1, vST)
    a(f"{lab('knoend')}:")
    a(f"s_add_u32 s41, s41, 1\ns_add_u32 s44, s44, 32\ns_cmp_lt_u32 s41, 32\ns_cbranch_scc1 {lab('kunit')}")

    a(f"v_mov_b32 v{vFl}, {FL_F}")
    ldswait("wF", vFl, vT, "1", 2)
    a(f"v_and_b32 v{vT}, 15, v2\nv_lshrrev_b32 v{vT}, 2, v{vT}\nv_lshrrev_b32 v{vA}, 4, v2\nv_lshl_add_u32 v{vA}, v{vA}, 3, v{vT}\nv_mul_u32_u24 v{vA}, {SROW}, v{vA}")
    a(f"v_and_b32 v{vT}, 3, v2\nv_lshlrev_b32 v{vT}, 3, v{vT}\nv_add_u32 v{vA}, v{vA}, v{vT}\ns_lshl_b32 s45, s20, 5\ns_add_u32 s45, s45, {STAGE}\nv_add_u32 v{vA}, s45, v{vA}")
    n = 0
    for uu in range(8):
        for ks in range(2):
            for hf in range(2):
                a(f"ds_read_b64_tr_b16 {vr(EF+(uu*2+ks)*4+2*hf,2)}, v{vA} offset:{(32*ks+4*hf)*SROW+uu*128}")
                n += 1
                if n % 8 == 0: a("s_waitcnt lgkmcnt(4)")
    a("s_waitcnt lgkmcnt(0)")
    for i in range(16): a(f"v_mov_b32 v{ACC+i}, 0")
    stamp(5, vST)

    def w_tiles(pk_off_sgpr_or_imm, uus, dst_addr, offs):
        a(f"v_and_b32 v{vT}, 1, v2\nv_lshlrev_b32 v{vT}, 7, v{vT}\nv_add_u32 v{vT}, v{vT}, v{vG16}\nv_add_u32 v{vT}, {pk_off_sgpr_or_imm}, v{vT}")
        a(f"ds_read_b128 {vr(BB,4)}, v{vT}\nds_read_b128 {vr(BB+4,4)}, v{vT} offset:64\ns_waitcnt lgkmcnt(0)")
        for n, uu in enumerate(uus):
            a(f"v_mfma_f32_16x16x32_bf16 {vr(R+4*n,4)}, {vr(EF+uu*8,4)}, {vr(BB,4)}, 0")
        if len(uus) < 4: a("s_nop 7")
        for n, uu in enumerate(uus):
            a(f"v_mfma_f32_16x16x32_bf16 {vr(R+4*n,4)}, {vr(EF+uu*8+4,4)}, {vr(BB+4,4)}, {vr(R+4*n,4)}")
        a("s_nop 7\ns_nop 1")
        for i in range(4 * len(uus)):
            a(f"v_add_f32_dpp v{R+i}, v{R+i}, v{R+i} quad_perm:[1,0,3,2] row_mask:0xf bank_mask:0xf")
        a(COL0)
        for n, uu in enumerate(uus): a(f"ds_write_b128 v{dst_addr}, {vr(R+4*n,4)} offset:{offs[n]}")
        a("s_mov_b64 exec, -1")
    def v_body():
        for i in range(4 if not noread else 0):
            for hf in range(2):
                a(f"ds_read_b128 {vr(R+4*(2*i+hf),4)}, v{vA} offset:{i*512+hf*256}")
        for k in range(8):
            i, hf = k >> 1, k & 1
            a(f"s_waitcnt lgkmcnt({7-k})")
            if k == 7: signal_consumed()
            if noread or nocomp: continue
            r = R + 4 * k
            for e in range(4):
                a(f"v_lshlrev_b32 v{X+2*e}, 16, v{r+e}\nv_and_b32 v{X+2*e+1}, s55, v{r+e}")
            wp = W4 + (i & ~1)
            sel = "op_sel_hi:[1,0,1]" if i % 2 == 0 else "op_sel:[0,1,0] op_sel_hi:[1,1,1]"
            for e in range(4):
                ac = ACC + 8 * hf + 2 * e
                a(f"v_pk_fma_f32 {vr(ac,2)}, {vr(X+2*e,2)}, {vr(wp,2)}, {vr(ac,2)} {sel}")
    a("s_mov_b32 s49, 0")
    a(f"{lab('vhead')}:")
    a(f"s_lshl_b32 s48, s49, 2\ns_add_u32 s48, s48, {FL_P}\nv_mov_b32 v{vFl}, s48")
    ldswait("wP", vFl, vT, "1", 2)
    if NP:
        a(f"s_cmp_eq_u32 s49, 2\ns_cbranch_scc0 {lab('now3')}")
        a(f"s_lshl_b32 s48, s20, 6\ns_add_u32 s48, s48, {WS3}\nv_add_u32 v{vA}, s48, v{vG16}")
        w_tiles(PK + 3 * 256, list(range(NS3, 8)), vA, [n * 256 for n in range(NP)])
        a(f"v_mov_b32 v{vFl}, {FL_W3}\ns_waitcnt lgkmcnt(0)")
        one_lane(f"ds_add_u32 v{vFl}, v{vOne}")
        a(f"{lab('now3')}:")
        if NS3 == 0:
            a(f"s_cmp_eq_u32 s49, 3\ns_cbranch_scc1 {lab('vpool')}")
    a(f"s_lshl_b32 s48, s49, 8\ns_add_u32 s48, s48, {PK}")
    w_tiles("s48", list(range(8)), vWs0, [uu * 64 for uu in range(8)])
    a(f"v_mov_b32 v{vWs}, v{vWs0}\ns_waitcnt lgkmcnt(0)")
    a(f"{lab('vunit')}:")
    unit_head("vw", vRdV)
    a(f"ds_read_b128 {vr(W4,4)}, v{vWs}")
    v_body()
    a(f"v_add_u32 v{vWs}, 64, v{vWs}")
    a(f"s_and_b32 s45, s41, 7\ns_add_u32 s41, s41, 1\ns_add_u32 s44, s44, 32")
    if NP and NS3:
        a(f"s_cmp_eq_u32 s41, {U0}\ns_cbranch_scc1 {lab('vpool')}")
    a(f"s_cmp_eq_u32 s45, 7\ns_cbranch_scc0 {lab('vunit')}")
    if NP:
        a(f"s_branch {lab('vhend')}")
        a(f"{lab('vpool')}:")
        a(f"s_lshl_b32 s48, s20, 6\ns_add_u32 s48, s48, {WQ}\nv_add_u32 v{vWs0}, s48, v{vG16}")
        a(f"{lab('vpw')}:\nds_read_b64 v[{X}:{X+1}], v{vLand}\ns_waitcnt lgkmcnt(0)\nv_readfirstlane_b32 s50, v{X}\nv_readfirstlane_b32 s51, v{X+1}")
        a(f"s_cmp_ge_i32 s50, s44\ns_cbranch_scc1 {lab('vpw_ok')}")
        a(f"s_cmp_eq_u32 s51, 0\ns_cbranch_scc1 {lab('vpw_sl')}\ns_cmp_ge_u32 s41, s51\ns_cbranch_scc1 {lab('vhend')}")
        a(f"{lab('vpw_sl')}:\n{sleep(csleep)}\ns_branch {lab('vpw')}\n{lab('vpw_ok')}:")
        a(f"s_and_b32 s45, s41, 1\ns_lshl_b32 s45, s45, 15\nv_add_u32 v{vA}, s45, v{vRdV}")
        a(f"s_and_b32 s45, s41, 3\ns_lshl_b32 s45, s45, 8\nv_add_u32 v{vWs}, s45, v{vWs0}")
        a(f"ds_read_b128 {vr(W4,4)}, v{vWs}")
        v_body()
        a(f"s_add_u32 s41, s41, 1\ns_add_u32 s44, s44, 32\ns_branch {lab('vpw')}")
    a(f"{lab('vhend')}:")
    for e in range(8): a(f"v_permlane32_swap_b32 v{ACC+e}, v{ACC+8+e}")
    for e in range(8): a(f"v_add_f32 v{X+e}, v{ACC+e}, v{ACC+8+e}")
    a(f"s_lshl_b32 s48, s49, 12\nv_add_u32 v{vA}, s48, v{vOa}\ns_lshl_b32 s48, s49, 2\ns_add_u32 s48, s48, {FL_O}\nv_mov_b32 v{vFl}, s48")
    for q in range(4): a(f"v_permlane16_swap_b32 v{X+2*q}, v{X+2*q+1}")
    for q in range(4): a(f"v_add_f32 v{TMP+q}, v{X+2*q}, v{X+2*q+1}")
    for q in range(4): a(f"ds_write_b32 v{vA}, v{TMP+q} offset:{8*q}")
    for i in range(16): a(f"v_mov_b32 v{ACC+i}, 0")
    a("s_waitcnt lgkmcnt(0)")
    one_lane(f"ds_add_u32 v{vFl}, v{vOne}")
    stamp_s("s49", 6, vST)
    a(f"s_add_u32 s49, s49, 1\ns_cmp_lt_u32 s49, 4\ns_cbranch_scc1 {lab('vhead')}")
    srd(36, 14, 15, 32768)
    a(f"s_lshl_b32 s45, s20, 2\ns_add_u32 s45, s45, {FL_O}\nv_mov_b32 v{vFl}, s45")
    a(f"v_lshlrev_b32 v{vA}, 4, v2\ns_lshl_b32 s45, s20, 12\ns_add_u32 s45, s45, {OP}\nv_add_u32 v{vT2}, s45, v{vA}")
    a("s_add_u32 s44, s23, s20")
    a(f"s_lshl_b32 s45, s44, 14\ns_add_u32 s45, s45, {O_OFF}\ns_lshl_b32 s46, s22, 10\ns_add_u32 s46, s46, s45")
    a(f"s_lshl_b32 s47, s21, 8\ns_lshl_b32 s48, s20, 2\ns_add_u32 s47, s47, s48\ns_add_u32 s47, s47, {C_OFF + 16}")
    ldswait("wof", vFl, vT, "4", 1)
    for w in range(4): a(f"ds_read_b128 {vr(R+4*w,4)}, v{vT2} offset:{w*1024}")
    a(f"v_mov_b32 v{vT}, 0\nv_mov_b32 v{vFl}, 1")
    a("s_waitcnt lgkmcnt(0)")
    for i in range(4): a(f"v_add_f32 v{R+i}, v{R+i}, v{R+4+i}\nv_add_f32 v{R+8+i}, v{R+8+i}, v{R+12+i}")
    for i in range(4): a(f"v_add_f32 v{R+i}, v{R+i}, v{R+8+i}")
    a(f"buffer_store_dwordx4 {vr(R,4)}, v{vA}, s[32:35], s46 offen {oflags}\ns_waitcnt vmcnt(0)")
    one_lane(f"buffer_atomic_add v{vFl}, v{vT}, s[32:35], s47 offen sc0")
    a(f"s_waitcnt vmcnt(0)\nv_readfirstlane_b32 s50, v{vFl}")
    stamp(10, vST)
    a(f"s_cmp_eq_u32 s50, 15\ns_cbranch_scc0 {lab('cend')}")
    GB = 4
    for jj in range(16):
        a(f"buffer_load_dwordx4 {vr(GB+4*jj,4)}, v{vA}, s[32:35], s45 offen offset:{(jj%4)*1024} sc1")
        if jj % 4 == 3 and jj < 15: a("s_add_u32 s45, s45, 4096")
    a(f"v_lshlrev_b32 v{vT}, 3, v2\ns_lshl_b32 s45, s44, 9\ns_waitcnt vmcnt(0)")
    for st in (8, 4, 2, 1):
        for k in range(st):
            for i in range(4): a(f"v_add_f32 v{GB+4*k+i}, v{GB+4*k+i}, v{GB+4*(k+st)+i}")
    a(f"v_cvt_pk_bf16_f32 v{GB+4}, v{GB}, v{GB+1}\nv_cvt_pk_bf16_f32 v{GB+5}, v{GB+2}, v{GB+3}")
    a(f"buffer_store_dwordx2 {vr(GB+4,2)}, v{vT}, s[36:39], s45 offen {outflags}")
    a(f"{lab('cend')}:")
    if dbgtime:
        a(f"s_waitcnt vmcnt(0)\ns_memrealtime s[98:99]\ns_waitcnt lgkmcnt(0)\nv_mov_b32 v{vT}, s98\nv_mov_b32 v{vFl}, 0")
        one_lane(f"global_atomic_umax v{vFl}, v{vT}, s[16:17] offset:4")
    if stamps:
        a("s_waitcnt vmcnt(0)")
        stamp(11, vST)
        a(f"s_cmp_eq_u32 s20, 3\ns_cbranch_scc0 {lab('done')}")
        stamp_store(vST, vT, 0)
    a(f"s_branch {lab('done')}")

    a("; ---------------------------------------------------------------- helper")
    a(f"{lab('helper')}:")
    if hprio: a(f"s_setprio {hprio}")
    vL16 = 3; vZ = 4; vOne = 5; vL4 = 10; vP = 13; vT1 = 14; vT2 = 15; vFl = 18; vST = 19; vOr = 20; vPsr = 21; vMo = 22
    AA = 48
    a(f"v_lshlrev_b32 v{vL4}, 2, v2\nv_mov_b32 v{vZ}, 0\nv_add_u32 v{vT1}, {FLAGS}, v{vL4}\nds_write_b32 v{vT1}, v{vZ}")
    a(f"v_lshlrev_b32 v{vL16}, 4, v2\nv_mov_b32 v{vOne}, 1")
    if dbgtime: a("s_memrealtime s[98:99]")
    a("s_waitcnt lgkmcnt(0)\ns_barrier")
    if fakehelp:
        a(f"v_mov_b32 v{vT1}, {FL_P}\nv_mov_b32 v24, 1\nv_mov_b32 v25, 1\nv_mov_b32 v26, 1\nv_mov_b32 v27, 1\nds_write_b128 v{vT1}, v[24:27]\nds_write_b128 v{vT1}, v[24:27] offset:16\ns_waitcnt lgkmcnt(0)\ns_branch {lab('done')}")
    if fakecons: a(f"v_mov_b32 v{vT1}, {FL_CONS}\nv_mov_b32 v24, 1000\nv_mov_b32 v25, 1000\nv_mov_b32 v26, 1000\nv_mov_b32 v27, 1000\nds_write_b128 v{vT1}, v[24:27]\ns_waitcnt lgkmcnt(0)")
    if htest:
        srd(32, 18, 19, WS_SIZE)
        a(f"v_mov_b32 v{vFl}, {FL_LAND}\ns_mov_b32 s42, 200\ns_lshl_b32 s46, s2, 10\ns_add_u32 s46, s46, {O_OFF}\ns_lshr_b32 s47, s2, 2\ns_lshl_b32 s47, s47, 8\ns_add_u32 s47, s47, {C_OFF}")
        a(f"s_lshr_b32 s45, s2, 4\ns_lshl_b32 s45, s45, 14\ns_add_u32 s45, s45, {O_OFF}")
        a(f"{lab('ht')}:")
        ldswait("htw", vFl, vT1, "s42", 16)
        for op in htest.split("+"):
            if op == "st1k": a(f"buffer_store_dwordx4 {vr(AA,4)}, v{vL16}, s[32:35], s46 offen sc1\ns_waitcnt vmcnt(0)")
            if op == "st1kp": a(f"buffer_store_dwordx4 {vr(AA,4)}, v{vL16}, s[32:35], s46 offen\ns_waitcnt vmcnt(0)")
            if op == "st1knt": a(f"buffer_store_dwordx4 {vr(AA,4)}, v{vL16}, s[32:35], s46 offen sc1 nt\ns_waitcnt vmcnt(0)")
            if op == "st256": a(f"buffer_store_dword v{AA}, v{vL4}, s[32:35], s46 offen sc1\ns_waitcnt vmcnt(0)")
            if op == "at":
                one_lane(f"buffer_atomic_add v{vOne}, v{vZ}, s[32:35], s47 offen offset:8 sc0")
                a(f"s_waitcnt vmcnt(0)\nv_mov_b32 v{vOne}, 1")
            if op == "ld16":
                for jj in range(16):
                    a(f"buffer_load_dwordx4 {vr(AA+4*jj,4)}, v{vL16}, s[32:35], s45 offen offset:{(jj%4)*1024} sc1")
                a("s_waitcnt vmcnt(0)")
            if op == "ld1": a(f"buffer_load_dword v{AA+8}, v{vL4}, s[32:35], s46 offen sc1\ns_waitcnt vmcnt(0)")
            if op == "st16x256":
                for m in range(16): a(f"buffer_store_dword v{AA}, v{vL4}, s[32:35], s45 offen offset:{m*256} sc1")
        a(f"s_add_u32 s42, s42, 256\ns_cmp_lt_u32 s42, 2048\ns_cbranch_scc1 {lab('ht')}\ns_branch {lab('done')}")
    if nocons or nohelp: a(f"s_branch {lab('done')}")
    if dbgtime:
        a(f"s_not_b32 s98, s98\nv_mov_b32 v{vT1}, s98")
        one_lane(f"global_atomic_umax v{vZ}, v{vT1}, s[16:17] offset:8")
    srd(24, 10, 11, 0x100000)
    srd(28, 12, 13, 0x100000)
    srd(32, 18, 19, WS_SIZE)
    srd(36, 14, 15, 32768)
    if stamps: a(f"v_mov_b32 v{vST}, 0")
    stamp(0, vST)
    def dma(tag, srdname):
        if noef or hmode == 2:
            a("s_waitcnt vmcnt(0)")
            return
        a(f"s_mov_b32 s40, {STAGE}\ns_lshl_b32 s41, s22, {7 if inter else 10}\ns_mov_b32 s43, 64")
        vD = vL16
        if inter:
            vD = 24
            a(f"v_lshrrev_b32 v24, 3, v2\nv_lshlrev_b32 v24, 11, v24\nv_and_b32 v25, 7, v2\nv_lshlrev_b32 v25, 4, v25\nv_add_u32 v24, v24, v25")
        a(f"{lab(tag)}:")
        a(f"s_mov_b32 m0, s40\ns_add_u32 s40, s40, {SROW}\nbuffer_load_dwordx4 v{vD}, {srdname}, s41 offen {eflags} lds")
        a(f"s_add_u32 s41, s41, 16384\ns_waitcnt vmcnt({dmadepth-1})\ns_sub_u32 s43, s43, 1\ns_cmp_lg_u32 s43, 0\ns_cbranch_scc1 {lab(tag)}")
        a("s_waitcnt vmcnt(0)")
    a(f"s_lshl_b32 s58, s21, 8\ns_add_u32 s58, s58, {C_OFF}")
    a(f"s_lshl_b32 s59, s23, 8\ns_add_u32 s59, s59, {M_OFF}")
    a(f"s_cmp_lg_u32 s22, 0\ns_cbranch_scc1 {lab('noreset')}")
    for i in range(4): a(f"v_mov_b32 v{AA+i}, 0\nv_mov_b32 v{AA+4+i}, -1")
    a(f"s_mov_b64 exec, 3\nbuffer_store_dwordx4 {vr(AA,4)}, v{vL16}, s[32:35], s58 offen sc1\ns_mov_b64 exec, -1")
    a(f"buffer_store_dwordx4 {vr(AA+4,4)}, v{vL16}, s[32:35], s59 offen sc1")
    a(f"s_lshl_b32 s46, s21, 4\nv_mov_b32 v{vT1}, s46\ns_waitcnt vmcnt(0)")
    one_lane(f"global_store_dword v{vT1}, v{vOne}, s[16:17] sc1")
    a(f"{lab('noreset')}:")
    dma("edma", "s[24:27]")
    a(f"v_mov_b32 v{vFl}, {FL_E}\nds_write_b32 v{vFl}, v{vOne}")
    stamp(1, vST)
    vSr = 21; vL8 = 23
    a(f"v_add_u32 v{vOr}, {OP}, v{vL16}\nv_lshlrev_b32 v{vL8}, 3, v2")
    a(f"v_lshrrev_b32 v{vSr}, 4, v2\nv_and_b32 v{vSr}, 1, v{vSr}\nv_lshlrev_b32 v{vSr}, 10, v{vSr}\nv_and_b32 v{vT1}, 15, v2\nv_lshlrev_b32 v{vT1}, 4, v{vT1}\nv_add_u32 v{vSr}, v{vSr}, v{vT1}\nv_add_u32 v{vSr}, {PS}, v{vSr}")
    a(f"v_and_b32 v{vMo}, 1, v2\nv_lshlrev_b32 v{vMo}, 7, v{vMo}\nv_lshrrev_b32 v{vT1}, 1, v2\nv_lshlrev_b32 v{vT1}, 2, v{vT1}\nv_add_u32 v{vMo}, v{vMo}, v{vT1}")

    def wave_reduce(op, v, t1, t2):
        for ror in (8, 4, 2, 1):
            a(f"s_nop 1\n{op}_dpp v{v}, v{v}, v{v} row_ror:{ror} row_mask:0xf bank_mask:0xf")
        a(f"v_mov_b32 v{t1}, v{v}\nv_mov_b32 v{t2}, v{v}\ns_nop 1\nv_permlane16_swap_b32 v{t1}, v{t2}\n{op} v{v}, v{t1}, v{t2}")
        a(f"s_nop 0\nv_mov_b32 v{t1}, v{v}\nv_mov_b32 v{t2}, v{v}\ns_nop 1\nv_permlane32_swap_b32 v{t1}, v{t2}\n{op} v{v}, v{t1}, v{t2}")
    def wait_s(g):
        a(f"v_mov_b32 v{vFl}, {FL_S+4*g}")
        ldswait(f"s{g}w", vFl, vT1, "4", hsleep or 4)
    def s_publish(rd):
        t = f"r{rd}"
        if hmode in (1, 2, 4): return
        for w in range(4): a(f"ds_read_b128 {vr(AA+4*w,4)}, v{vSr} offset:{rd*2048+w*256}")
        a(f"s_lshl_b32 s45, s21, 1\ns_add_u32 s45, s45, {rd}\ns_lshl_b32 s45, s45, 13\ns_add_u32 s45, s45, {P_OFF}\ns_lshl_b32 s46, s22, 9\ns_add_u32 s46, s46, s45")
        a("s_waitcnt lgkmcnt(0)")
        for i in range(4): a(f"v_add_f32 v{AA+i}, v{AA+i}, v{AA+4+i}\nv_add_f32 v{AA+8+i}, v{AA+8+i}, v{AA+12+i}")
        for i in range(4): a(f"v_add_f32 v{AA+i}, v{AA+i}, v{AA+8+i}")
        a(f"s_mov_b32 exec_hi, 0\nbuffer_store_dwordx4 {vr(AA,4)}, v{vL16}, s[32:35], s46 offen {sflags}\ns_mov_b64 exec, -1")
        a(f"v_mov_b32 v{vT2}, 1")
        a("s_waitcnt vmcnt(0)")
        one_lane(f"buffer_atomic_add v{vT2}, v{vZ}, s[32:35], s58 offen offset:{4*rd} sc0")
        stamp(2 + 4 * rd, vST)
        a(f"s_waitcnt vmcnt(0)\nv_readfirstlane_b32 s50, v{vT2}")
        a(f"s_cmp_eq_u32 s50, 15\ns_cbranch_scc0 {lab(t+'_nl')}")
        for jj in range(16):
            if jj % 8 == 0 and jj: a("s_add_u32 s45, s45, 4096")
            for h in range(2):
                a(f"buffer_load_dword v{AA+16*h+jj}, v{vL4}, s[32:35], s45 offen offset:{(jj%8)*512+h*256} sc1")
        a("s_waitcnt vmcnt(0)")
        for h in range(2):
            B0 = AA + 16 * h
            T = AA + 40
            for st in (8, 4, 2, 1):
                for i in range(st): a(f"v_add_f32 v{B0+i}, v{B0+i}, v{B0+i+st}")
            a(f"v_mul_f32 v{vP}, 0x3db8aa3b, v{B0}")
            a(f"v_mov_b32 v{T+1}, v{vP}")
            wave_reduce("v_max_f32", T + 1, T + 2, T + 3)
            a(f"v_sub_f32 v{vP}, v{vP}, v{T+1}\nv_exp_f32 v{vP}, v{vP}\ns_nop 0\nv_mov_b32 v{T+1}, v{vP}")
            wave_reduce("v_add_f32", T + 1, T + 2, T + 3)
            a(f"v_rcp_f32 v{T+1}, v{T+1}\ns_nop 0\nv_mul_f32 v{vP}, v{vP}, v{T+1}")
            a(f"v_cvt_pk_bf16_f32 v{T}, v{vP}, v{vP}\nv_lshlrev_b32 v{T}, 16, v{T}\nv_sub_f32 v{T+1}, v{vP}, v{T}\ns_nop 1")
            a(f"v_mov_b32_dpp v{T+2}, v{vP} quad_perm:[1,0,3,2] row_mask:0xf bank_mask:0xf")
            a(f"v_mov_b32_dpp v{T+3}, v{T+1} quad_perm:[1,0,3,2] row_mask:0xf bank_mask:0xf")
            a(f"v_cvt_pk_bf16_f32 v{T+4}, v{vP}, v{T+2}\nv_cvt_pk_bf16_f32 v{T+5}, v{T+3}, v{T+1}")
            a(f"v_and_b32 v{T+6}, 1, v2\nv_cmp_eq_u32 vcc, 1, v{T+6}\ns_nop 1\nv_cndmask_b32 v{T+4}, v{T+4}, v{T+5}, vcc")
            a(f"v_mov_b32 v{T+5}, 0x7fc07fc0\nv_cmp_eq_u32 vcc, -1, v{T+4}\ns_nop 1\nv_cndmask_b32 v{T+8+h}, v{T+4}, v{T+5}, vcc")
        for h in range(2):
            a(f"buffer_store_dword v{AA+48+h}, v{vMo}, s[32:35], s59 offen offset:{(2*rd+h)*256} sc1")
        a(f"{lab(t+'_nl')}:")
        stamp(3 + 4 * rd, vST)
    def p_fetch(rd):
        t = f"p{rd}"
        if hmode in (1, 2, 4):
            a(f"v_mov_b32 v{vFl}, {FL_P+8*rd}\nds_write_b32 v{vFl}, v{vOne}\nds_write_b32 v{vFl}, v{vOne} offset:4")
            return
        a(f"{lab(t)}:\nbuffer_load_dwordx2 {vr(AA,2)}, v{vL8}, s[32:35], s59 offen offset:{rd*512} sc1\ns_waitcnt vmcnt(0)\nv_cmp_eq_u32 vcc, -1, v{AA}\nv_cmp_eq_u32 s[46:47], -1, v{AA+1}\ns_nop 1\ns_or_b64 vcc, vcc, s[46:47]\ns_cmp_eq_u64 vcc, 0\ns_cbranch_scc1 {lab(t+'_ok')}\n{sleep(msleep)}\ns_branch {lab(t)}\n{lab(t+'_ok')}:")
        a(f"v_add_u32 v{vT1}, {PK+rd*512}, v{vL8}\nds_write_b64 v{vT1}, {vr(AA,2)}\nv_mov_b32 v{vFl}, {FL_P+8*rd}\ns_waitcnt lgkmcnt(0)\nds_write_b32 v{vFl}, v{vOne}\nds_write_b32 v{vFl}, v{vOne} offset:4")
        stamp(4 + 4 * rd, vST)

    wait_s(0)
    dma("fdma", "s[28:31]")
    a(f"v_mov_b32 v{vFl}, {FL_F}\nds_write_b32 v{vFl}, v{vOne}")
    stamp(18, vST)
    if hmode not in (1, 2, 4):
        a(f"s_lshl_b32 s46, s21, 4\nv_mov_b32 v{vT1}, s46")
        a(f"{lab('wgo')}:\nglobal_load_dword v{vT2}, v{vT1}, s[16:17] sc1\ns_waitcnt vmcnt(0)\nv_readfirstlane_b32 s50, v{vT2}\ns_cmp_ge_u32 s50, 1\ns_cbranch_scc1 {lab('wgo_ok')}\n{sleep(32)}\ns_branch {lab('wgo')}\n{lab('wgo_ok')}:")
    wait_s(1); s_publish(0)
    wait_s(2); p_fetch(0)
    wait_s(3); s_publish(1)
    a(f"v_mov_b32 v{vFl}, {FL_O}")
    ldswait("wo0", vFl, vT1, "4", hsleep or 8)
    p_fetch(1)
    if NP:
        a(f"v_mov_b32 v{vFl}, {FL_W3}")
        ldswait("ww3", vFl, vT1, "4", 8)
        a(f"s_mul_i32 s45, s21, {NTK*256}\ns_mul_i32 s46, s22, {NP*256}\ns_add_u32 s45, s45, s46\ns_add_u32 s45, s45, {W2_OFF}")
        nst = (NP * 256 + 1023) // 1024
        for n in range(nst):
            a(f"v_add_u32 v{vT1}, {WS3 + n*1024}, v{vL16}\nds_read_b128 {vr(AA+4*n,4)}, v{vT1}")
        a("s_waitcnt lgkmcnt(0)")
        if NP * 256 < 1024: a(f"s_mov_b32 exec_lo, {hex((1 << (NP*16)) - 1) if NP*16 < 32 else -1}\ns_mov_b32 exec_hi, 0")
        for n in range(nst):
            a(f"buffer_store_dwordx4 {vr(AA+4*n,4)}, v{vL16}, s[32:35], s45 offen offset:{n*1024} {sflags}")
        a(f"s_mov_b64 exec, -1\nv_mov_b32 v{vT2}, 1\ns_waitcnt vmcnt(0)")
        one_lane(f"buffer_atomic_add v{vT2}, v{vZ}, s[32:35], s58 offen offset:8 sc0")
        a(f"s_waitcnt vmcnt(0)\nv_readfirstlane_b32 s50, v{vT2}\ns_cmp_eq_u32 s50, 15\ns_cbranch_scc1 {lab('wall_ok')}")
        a(f"{lab('wall')}:\n{sleep(32)}\nbuffer_load_dword v{vT2}, v{vZ}, s[32:35], s58 offen offset:8 sc1\ns_waitcnt vmcnt(0)\nv_readfirstlane_b32 s50, v{vT2}\ns_cmp_ge_u32 s50, 16\ns_cbranch_scc0 {lab('wall')}\n{lab('wall_ok')}:")
        stamp(10, vST)
        a(f"s_mov_b32 s42, 0\nv_mov_b32 v{vFl}, {FL_LPROG}")
        a(f"{lab('tk')}:\ns_add_u32 s43, s42, {U0 - D}")
        ldswait("tkw", vFl, vT1, "s43", 2)
        a(f"v_mov_b32 v{vT2}, 1")
        one_lane(f"buffer_atomic_add v{vT2}, v{vZ}, s[32:35], s58 offen offset:12 sc0")
        a(f"s_and_b32 s43, s42, 3\ns_lshl_b32 s43, s43, 3\ns_add_u32 s43, s43, {FL_TQ}\nv_mov_b32 v{vT1}, s43\ns_add_u32 s42, s42, 1\nv_mov_b32 v{AA+1}, s42\ns_waitcnt vmcnt(0)\nv_mov_b32 v{AA}, v{vT2}")
        one_lane(f"ds_write_b64 v{vT1}, {vr(AA,2)}")
        a(f"v_readfirstlane_b32 s50, v{vT2}\ns_cmp_lt_u32 s50, {NTK}\ns_cbranch_scc1 {lab('tk')}")
        stamp(11, vST)
    if stamps:
        a("s_waitcnt vmcnt(0)")
        stamp(24, vST)
        stamp_store(vST, vT1, 1)
    a(f"{lab('done')}:\ns_endpgm")

    head = f"""; Linformer low-rank-projection attention, decode step (B=4 H=16 Sq=1 Skv=8192 Dh=256 R=64), gfx950.
;
; (the reference's E K and F V products re-associated), so K and V are each streamed from HBM once.
;
; @launch grid=(256,1,1) block=(384,1,1) lds={LDS_BYTES}
.amdgcn_target "amdgcn-amd-amdhsa--gfx950"
.text
.globl {N}
.p2align 8
.type {N},@function
"""
    tail = f"""
.section .rodata,"a"
.p2align 6
.amdhsa_kernel {N}
  .amdhsa_next_free_vgpr 176
  .amdhsa_next_free_sgpr 102
  .amdhsa_accum_offset 176
  .amdhsa_group_segment_fixed_size 0
  .amdhsa_kernarg_size 64
  .amdhsa_float_denorm_mode_32 3
  .amdhsa_float_denorm_mode_16_64 3
  .amdhsa_user_sgpr_count 2
  .amdhsa_user_sgpr_kernarg_segment_ptr 1
  .amdhsa_system_sgpr_workgroup_id_x 1
.end_amdhsa_kernel
"""
    return head + a.text() + tail

if __name__ == "__main__":
    out = sys.argv[1]
    kw = eval("dict(%s)" % (sys.argv[2] if len(sys.argv) > 2 else ""))
    open(out, "w").write(gen(**kw))
    import build
    print(build.build(out), "lds", LDS_BYTES)
```
